```python
import torch

def _softmax(x, axis=-1):
    return torch.softmax(x, dim=axis)
def _gelu(x):
    return torch.nn.functional.gelu(x, approximate="tanh")
def _silu(x):
    return torch.nn.functional.silu(x)
def _sigmoid(x):
    return torch.sigmoid(x)
def _layernorm(x, axis=-1, eps=1e-5):
    m = x.mean(dim=axis, keepdim=True)
    v = x.var(dim=axis, keepdim=True, unbiased=False)
    return (x - m) / torch.sqrt(v + eps)
def _scatter_add(tgt, idx, src, axis=0):
    return tgt.clone().index_add_(axis, idx, src)
def _segment_sum(src, seg, n):
    out = torch.zeros((n,) + src.shape[1:], dtype=src.dtype)
    return out.index_add_(0, seg, src)
def _pad(x, pw):
    flat = tuple(v for pair in reversed(pw) for v in pair)
    return torch.nn.functional.pad(x, flat)

kernel_name = 'interleave_layers__sliding_block__moe_arch_mod__prompt'

def setup_inputs():

    _w = (lambda a: (lambda t: t.to(torch.bfloat16) if t.is_floating_point() else t)(torch.as_tensor(a)))
    def _A_setup():
        B, S, D = 1, 2048, 512
        return {
            "x": _w((lambda *s: torch.randn(*s, dtype=torch.bfloat16) * 0.05)(B, S, D)),
            "wqkv": _w((lambda *s: torch.randn(*s, dtype=torch.bfloat16) * 0.05)(D, 3 * D)),
            "wo": _w((lambda *s: torch.randn(*s, dtype=torch.bfloat16) * 0.05)(D, D)),
        }
    _A_in = _A_setup()

    def _B_setup():
        B, S, D, F, C = 1, 2048, 512, 1792, 1
        return {
            "x": _w((lambda *s: torch.randn(*s, dtype=torch.bfloat16) * 0.05)(B, S, D)),
            "w_r": _w((lambda *s: torch.randn(*s, dtype=torch.bfloat16) * 0.05)(D)),
            "w_gate": _w((lambda *s: torch.randn(*s, dtype=torch.bfloat16) * 0.05)(D, F)),
            "w_up": _w((lambda *s: torch.randn(*s, dtype=torch.bfloat16) * 0.05)(D, F)),
            "w_down": _w((lambda *s: torch.randn(*s, dtype=torch.bfloat16) * 0.05)(F, D)),
        }
    _B_in = _B_setup()

    return {
        "A_x": _A_in["x"],
        "A_wqkv": _A_in["wqkv"],
        "A_wo": _A_in["wo"],
        "B_x": _B_in["x"],
        "B_w_r": _B_in["w_r"],
        "B_w_gate": _B_in["w_gate"],
        "B_w_up": _B_in["w_up"],
        "B_w_down": _B_in["w_down"],
    }

def reference(A_x, A_wqkv, A_wo, B_x, B_w_r, B_w_gate, B_w_up, B_w_down):
    def _A_ref(x, wqkv, wo):
        B, S, D = x.shape
        H = 32; Dh = D // H; W = 256
        qkv = (lambda x, *d: x.permute(*d))((x @ wqkv).reshape(B, S, 3, H, Dh), 2, 0, 3, 1, 4)
        q, k, v = qkv[0], qkv[1], qkv[2]
        scores = torch.einsum("bhqd,bhkd->bhqk", q, k) * (Dh ** -0.5)
        idx = torch.arange(S)
        mask = (idx[:, None] - idx[None, :] >= 0) & (idx[:, None] - idx[None, :] < W)
        scores = torch.where(mask[None, None], scores, -1e9)
        p = _softmax(scores, axis=-1)
        o = torch.einsum("bhqk,bhkd->bhqd", p, v)
        return (lambda x, *d: x.permute(*d))(o, 0, 2, 1, 3).reshape(B, S, D) @ wo

    def _B_ref(x, w_r, w_gate, w_up, w_down):
        B, S, D = x.shape
        C = 1
        r = x @ w_r
        idx = torch.argsort(-r, axis=-1)[:, :C]
        idx_e = (lambda x, n, axis: torch.repeat_interleave(x, n, dim=axis))(idx.reshape(B, C, 1), D, axis=2)
        x_sel = (lambda x, i, axis: torch.take_along_dim(x, i, dim=axis))(x, idx_e, axis=1)
        g = _silu(x_sel @ w_gate)
        u = x_sel @ w_up
        y = (g * u) @ w_down
        r_sel = _sigmoid((lambda x, i, axis: torch.take_along_dim(x, i, dim=axis))(r, idx, axis=1))
        y = y * r_sel.reshape(B, C, 1)
        b_off = (torch.arange(B) * S).reshape(B, 1)
        flat_idx = (idx + b_off).reshape(B * C)
        zero = (x * 0.0).reshape(B * S, D)
        upd = _scatter_add(zero, flat_idx, y.reshape(B * C, D), axis=0)
        return x + upd.reshape(B, S, D)

    x = A_x
    x = x + _A_ref(_layernorm(x, axis=-1), A_wqkv, A_wo)
    x = x + _B_ref(_layernorm(x, axis=-1), B_w_r, B_w_gate, B_w_up, B_w_down)
    x = x + _A_ref(_layernorm(x, axis=-1), A_wqkv, A_wo)
    x = x + _B_ref(_layernorm(x, axis=-1), B_w_r, B_w_gate, B_w_up, B_w_down)
    return x
```

```python
import re

TRANS = ("v_exp_f32","v_log_f32","v_rcp_f32","v_rsq_f32","v_sqrt_f32","v_sin_f32","v_cos_f32","v_rcp_iflag_f32","v_exp_f16","v_rcp_f16")

def regs_of(tok):
    tok = tok.strip()
    neg = tok.lstrip('-')
    if neg.startswith('abs(') and neg.endswith(')'): neg = neg[4:-1]
    if neg.startswith('|') and neg.endswith('|'): neg = neg[1:-1]
    m = re.fullmatch(r'([vas])(\d+)', neg)
    if m: return [(m.group(1), int(m.group(2)))]
    m = re.fullmatch(r'([vas])\[(\d+):(\d+)\]', neg)
    if m: return [(m.group(1), i) for i in range(int(m.group(2)), int(m.group(3))+1)]
    if neg in ('vcc',): return [('s','vcc_lo'),('s','vcc_hi')]
    if neg in ('vcc_lo','vcc_hi'): return [('s',neg)]
    if neg == 'exec': return [('s','exec_lo'),('s','exec_hi')]
    if neg in ('exec_lo','exec_hi'): return [('s',neg)]
    if neg == 'm0': return [('s','m0')]
    return []

def split_ops(rest):
    out=[]; depth=0; cur=''
    for ch in rest:
        if ch in '[(' : depth+=1
        if ch in '])' : depth-=1
        if ch==',' and depth==0:
            out.append(cur.strip()); cur=''
        else: cur+=ch
    if cur.strip(): out.append(cur.strip())
    return out

class Ins:
    __slots__=('text','op','kind','reads','writes','passes','cread','dpp','nop','lds_dma','store_wide','store_data','is_trans','perm','rdlane','aread','bread','vmem_sreads','mask_reads','lanesel')
    def __init__(self, text):
        self.text=text
        t=text.split(';')[0].strip()
        self.op=t.split()[0] if t else ''
        rest=t[len(self.op):].strip()
        ops=split_ops(rest)
        mods=''
        if ops:
            last=ops[-1].split()
            ops[-1]=last[0]
            mods=' '.join(last[1:])
        self.kind='other'; self.reads=[]; self.writes=[]; self.passes=0; self.cread=[]; self.dpp=False
        self.nop=0; self.lds_dma=False; self.store_wide=False; self.store_data=[]; self.is_trans=False
        self.perm=False; self.rdlane=False; self.aread=[]; self.bread=[]; self.vmem_sreads=[]; self.mask_reads=[]; self.lanesel=[]
        op=self.op
        R=lambda i: regs_of(ops[i]) if i<len(ops) else []
        if op=='s_nop':
            self.kind='nop'; self.nop=int(ops[0],0)
        elif op.startswith('v_mfma'):
            self.kind='mfma'
            self.passes = 8 if '32x32' in op else 4
            if '4x4x4' in op: self.passes=2
            self.writes=R(0); self.aread=R(1); self.bread=R(2); self.cread=R(3)
            self.reads=self.aread+self.bread+self.cread
        elif op.startswith('v_'):
            self.kind='valu'
            base=op.replace('_e32','').replace('_e64','').replace('_dpp','').replace('_sdwa','')
            self.is_trans = base in TRANS
            self.dpp = ('_dpp' in op) or ('row_' in mods) or ('quad_perm' in mods) or ('wave_' in mods)
            if base.startswith('v_cmp'):
                self.writes=R(0); self.reads=sum((R(i) for i in range(1,len(ops))),[])
            elif base in ('v_readfirstlane_b32','v_readlane_b32'):
                self.writes=R(0); self.reads=R(1); self.rdlane=True
                if base=='v_readlane_b32': self.lanesel=[r for r in R(2)]
            elif base=='v_writelane_b32':
                self.writes=R(0); self.reads=R(0)+R(1); self.lanesel=R(2)
            elif base.startswith('v_permlane') and 'swap' in base:
                self.writes=R(0)+R(1); self.reads=R(0)+R(1); self.perm=True
            elif base in ('v_add_co_u32','v_sub_co_u32','v_subrev_co_u32'):
                self.writes=R(0)+R(1); self.reads=R(2)+R(3)
            elif base in ('v_addc_co_u32','v_subb_co_u32'):
                self.writes=R(0)+R(1); self.reads=R(2)+R(3)+R(4)
            elif base=='v_cndmask_b32':
                self.writes=R(0); self.reads=R(1)+R(2)+R(3); self.mask_reads=R(3) if len(ops)>3 else regs_of('vcc')
                if len(ops)<=3: self.reads+=regs_of('vcc')
            else:
                self.writes=R(0); self.reads=sum((R(i) for i in range(1,len(ops))),[])
                if base in ('v_fmac_f32','v_dot2c_f32_bf16','v_fmamk_f32','v_pk_fmac_f16','v_mac_f32') or self.dpp:
                    self.reads=self.reads+R(0)
                if base.endswith('_d16') or '_sdwa' in op: self.reads=self.reads+R(0)
        elif op.startswith('ds_'):
            self.kind='ds'
            if op.startswith('ds_read') or op.startswith('ds_bpermute') or op.startswith('ds_permute') or op.startswith('ds_swizzle'):
                self.writes=R(0); self.reads=sum((R(i) for i in range(1,len(ops))),[])
            else:
                self.reads=sum((R(i) for i in range(0,len(ops))),[])
                if '_rtn' in op: self.writes=R(0); self.reads=sum((R(i) for i in range(1,len(ops))),[])
        elif op.startswith('buffer_') or op.startswith('global_'):
            self.kind='vmem'
            allr=[R(i) for i in range(len(ops))]
            is_lds = (' lds' in (' '+mods)) or op.startswith('global_load_lds')
            self.lds_dma=is_lds
            if op in ('buffer_inv','buffer_wbl2'):
                pass
            elif '_load' in op and not is_lds:
                self.writes=allr[0]; self.reads=sum(allr[1:],[])
                if 'd16' in op: self.reads=self.reads+allr[0]
            elif is_lds:
                self.reads=sum(allr,[])+[('s','m0')]
            elif '_store' in op:
                self.reads=sum(allr,[])
                data = allr[0] if op.startswith('buffer_') else allr[1]
                self.store_data=data
                self.store_wide = ('x3' in op or 'x4' in op)
            elif '_atomic' in op:
                self.reads=sum(allr,[])
                if 'sc0' in mods:
                    self.writes = allr[0]
            self.vmem_sreads=[r for r in self.reads if r[0]=='s']
        elif op.startswith('s_'):
            self.kind='salu'
            if op.startswith('s_load') or op.startswith('s_buffer_load'):
                self.kind='smem'; self.writes=R(0); self.reads=sum((R(i) for i in range(1,len(ops))),[])
            elif op.startswith('s_cmp') or op.startswith('s_cbranch') or op in ('s_branch','s_waitcnt','s_barrier','s_endpgm','s_setprio','s_sleep','s_bitcmp0_b32','s_bitcmp1_b32'):
                self.reads=sum((R(i) for i in range(len(ops))),[])
            elif op in ('s_memtime','s_memrealtime'):
                self.kind='smem'; self.writes=R(0)
            else:
                self.writes=R(0); self.reads=sum((R(i) for i in range(1,len(ops))),[])
                if 'saveexec' in op: self.writes=self.writes+regs_of('exec')
    def states(self):
        return self.nop+1 if self.kind=='nop' else 1

def need(prev, cur):
    n=0
    pw=set(prev.writes);
    cr=set(cur.reads); cw=set(cur.writes)
    pwv={r for r in pw if r[0] in 'va'}
    pws={r for r in pw if r[0]=='s'}
    if prev.kind=='valu' and prev.op.startswith('v_dot'):
        if (pwv & (cr|cw)):
            ops=split_ops(cur.text.split(';')[0].strip()[len(cur.op):].strip()) if cur.op==prev.op else []
            same_c = cur.op==prev.op and not (pwv & (set(regs_of(ops[1]))|set(regs_of(ops[2]))))
            if not same_c: n=max(n,3)
    if prev.kind=='valu':
        if cur.kind=='mfma' and pwv & cr: n=max(n,2)
        if cur.kind=='valu':
            if prev.is_trans and not cur.is_trans and (pwv & cr): n=max(n,1)
            if prev.is_trans and cur.is_trans and (pwv & cr): n=max(n,1)
            if cur.perm and (pwv & cr): n=max(n,2)
            if cur.dpp and (pwv & cr): n=max(n,2)
            if cur.rdlane and (pwv & cr): n=max(n,1)
            if pws & set(cur.lanesel): n=max(n,4)
            if pws & cr: n=max(n,2)
            ex={('s','exec_lo'),('s','exec_hi')}
            if (pws & ex):
                if cur.dpp: n=max(n,5)
                if cur.rdlane or cur.perm: n=max(n,4)
        if cur.kind=='mfma' and (pws & {('s','exec_lo'),('s','exec_hi')}): n=max(n,4)
        if cur.kind=='vmem' and (pws & set(cur.vmem_sreads)): n=max(n,5)
        if prev.is_trans and cur.kind in ('ds','vmem') and (pwv & cr): n=max(n,1)
        if cur.kind in ('salu','smem') and (pws & cr): n=max(n,1)
    if prev.kind=='mfma':
        P=prev.passes
        tbl_ab={2:5,4:8,8:12,16:20}[P]; tbl_c={2:4,4:6,8:10,16:18}[P]
        if cur.kind=='mfma':
            if pwv & (set(cur.aread)|set(cur.bread)): n=max(n,tbl_ab)
            if pwv & set(cur.cread):
                if not (list(cur.cread)==list(prev.writes) and cur.passes==P): n=max(n,tbl_c)
                elif P==2: n=max(n,2)
            elif pwv & cw:
                n=max(n,tbl_c)
        elif cur.kind=='valu':
            if pwv & (cr|cw): n=max(n,tbl_ab)
            if set(prev.cread) & cw: n=max(n,{2:1,4:3,8:7,16:15}[P])
        elif cur.kind in ('ds','vmem'):
            if pwv & (cr|cw): n=max(n,tbl_ab)
            if set(prev.cread) & cw: n=max(n,{2:1,4:3,8:7,16:15}[P])
    if prev.kind in ('salu',):
        if ('s','m0') in pw and cur.lds_dma: n=max(n,1)
    if prev.kind=='vmem' and prev.store_wide:
        sd=set(prev.store_data)
        if cur.kind=='valu' and (sd & cw): n=max(n,2)
        elif cur.kind in ('mfma','ds','vmem') and (sd & cw): n=max(n,1)
    return n

def fix_hazards(lines):
    out=[]; hist=[]
    pending={}
    nins=0
    for ln in lines:
        s=ln.strip()
        if not s or s.startswith(';') or s.startswith('.') and not s.endswith(':') or s.startswith('//'):
            out.append(ln); continue
        if s.endswith(':'):
            lab=s[:-1]
            for snap in pending.pop(lab,[]):
                hist = hist + snap
            out.append(ln); continue
        ins=Ins(s)
        req=0
        for p,d in hist:
            k=need(p,ins)-d
            if k>req: req=k
        if ins.kind=='nop': req=0
        while req>0:
            k=min(req,16)
            out.append(f"  s_nop {k-1}"); nins+=1
            hist=[[p,d+k] for p,d in hist]
            req-=k
        out.append(ln)
        st=ins.states()
        hist=[[p,d+st] for p,d in hist if d+st<24]
        hist.append([ins,0])
        if ins.op.startswith('s_cbranch') or ins.op=='s_branch':
            tgt=s.split()[-1]
            pending.setdefault(tgt,[]).append([[p,d] for p,d in hist])
            if ins.op=='s_branch': hist=[]
        if ins.op in('s_endpgm','s_setpc_b64'): hist=[]
    return out, nins

class Asm:
    def __init__(self):
        self.lines=[]
    def __call__(self, text):
        for l in text.strip('\n').split('\n'):
            if l.strip(): self.lines.append('  '+l.strip() if not l.strip().endswith(':') else l.strip())
    def label(self,n): self.lines.append(n+':')
    def comment(self,c): self.lines.append('  ; '+c)
    def raw(self,t): self.lines.append(t)
    def finish(self):
        out,n=fix_hazards(self.lines)
        return '\n'.join(out)+'\n'

def vr(a,n=1):
    return f"v{a}" if n==1 else f"v[{a}:{a+n-1}]"
def ar(a,n=1):
    return f"a{a}" if n==1 else f"a[{a}:{a+n-1}]"
def sr(a,n=1):
    return f"s{a}" if n==1 else f"s[{a}:{a+n-1}]"
```

```python
from asmfw import *
import struct
def f2u(x): return struct.unpack('<I', struct.pack('<f', x))[0]
def fhex(x): return hex(f2u(x))

MB=1<<20
WS_Q=[0*MB, 8*MB]; WS_K=[2*MB,10*MB]; WS_V=[4*MB,12*MB]; WS_O=[6*MB,14*MB]
WS_X0F=16*MB; WS_X1F=18*MB; WS_X3F=20*MB
SMALL=22*MB
WS_ST=[SMALL+0, SMALL+0x8000]
WS_CS=SMALL+0x10000
WS_SEL=[SMALL+0x12000, SMALL+0x12100]
WS_X2S=SMALL+0x13000
WS_PART=[SMALL+0x20000, SMALL+0x40000]
WS_TS=SMALL+0x100000
WS_SIZE=0x10000000
EPS=1e-5
QSCALE=0.25*1.4426950408889634

class KB:
    def __init__(self,name,prof=False,kidx=0):
        self.name=name; self.a=Asm(); self.vm=[]; self.lg=[]; self.prof=prof; self.kidx=kidx
    def __call__(self,t): self.a(t)
    def label(self,n): self.a.label(self.name+'_'+n)
    def L(self,n): return self.name+'_'+n
    def vmem(self,t,tag):
        self.a(t); self.vm.append(tag); assert len(self.vm)<=63, "too many vmem in flight"
    def wait_vm(self,tag):
        idx=max(i for i,t in enumerate(self.vm) if t==tag)
        n=len(self.vm)-1-idx
        self.a(f"s_waitcnt vmcnt({n})"); self.vm=self.vm[idx+1:]
    def wait_vm_all(self):
        self.a("s_waitcnt vmcnt(0)"); self.vm=[]
    def ds(self,t,tag='x'):
        self.a(t); self.lg.append(tag)
    def wait_lg(self,tag=None):
        if tag is None or tag not in self.lg:
            if tag is None:
                self.a("s_waitcnt lgkmcnt(0)"); self.lg=[]
            return
        idx=max(i for i,t in enumerate(self.lg) if t==tag)
        n=len(self.lg)-1-idx
        assert n<=15
        self.a(f"s_waitcnt lgkmcnt({n})"); self.lg=self.lg[idx+1:]
    def srd(self,s,ptr,size):
        self.a(f"""s_mov_b32 s{s}, s{ptr}
s_and_b32 s{s+1}, s{ptr+1}, 0xffff
s_mov_b32 s{s+2}, {hex(size)}
s_mov_b32 s{s+3}, 0x20000""")
    def header(self):
        return f".globl {self.name}\n.p2align 8\n.type {self.name},@function\n{self.name}:\n"
    def kd(self,vgpr,sgpr,accum):
        return f""".amdhsa_kernel {self.name}
  .amdhsa_next_free_vgpr {vgpr}
  .amdhsa_next_free_sgpr {sgpr}
  .amdhsa_accum_offset {accum}
  .amdhsa_group_segment_fixed_size 0
  .amdhsa_kernarg_size 88
  .amdhsa_user_sgpr_count 2
  .amdhsa_user_sgpr_kernarg_segment_ptr 1
  .amdhsa_system_sgpr_workgroup_id_x 1
  .amdhsa_float_denorm_mode_32 3
.end_amdhsa_kernel
"""
    def stamp(self,slot,sreg):
        if not self.prof: return
        self.a(f"s_memrealtime s[{sreg+2*slot}:{sreg+2*slot+1}]")
    def stamp_flush(self,nslots,sreg,wsrd,vtmp,swave,swg='s2'):
        if not self.prof: return
        self.a(f"""s_waitcnt lgkmcnt(0)
s_cmp_lg_u32 s{swave}, 0
s_cbranch_scc1 {self.L('nostamp')}
s_lshl_b32 s{sreg+2*nslots}, {swg}, 6
s_add_u32 s{sreg+2*nslots}, s{sreg+2*nslots}, {hex(WS_TS+self.kidx*512*64)}
v_mov_b32 v{vtmp+2}, 0""")
        for i in range(nslots):
            self.a(f"""v_mov_b32 v{vtmp}, s{sreg+2*i}
v_mov_b32 v{vtmp+1}, s{sreg+2*i+1}
buffer_store_dwordx2 v[{vtmp}:{vtmp+1}], v{vtmp+2}, s[{wsrd}:{wsrd+3}], s{sreg+2*nslots} offen offset:{8*i}
s_nop 1""")
        self.label('nostamp')
    def text(self):
        return self.header()+self.a.finish()
```

```python
from common import *

import os
def gen_qkv1(prof=False,kidx=0,NS=4):
    NODOT=os.environ.get("NODOT")
    k=KB('qkv1_kernel',prof,kidx)
    CH=28672
    accQ,accK,accV=16,32,48
    WF=lambda p,u: 64+12*p+4*u
    XF=lambda p: 88+4*p
    S2=[96,97]; S1=[98,99]; CSA=[100,101,102]
    VOX=104; VOW=108; XRD=112; WRD=116; ONES=117
    k("s_cmp_ge_u32 s2, 256")
    k(f"s_cbranch_scc1 {k.L('end')}")
    k.stamp(0,30)
    k.dbg_begin()
    k("""s_load_dwordx4 s[4:7], s[0:1], 0
s_load_dwordx2 s[20:21], s[0:1], 80
v_lshrrev_b32 v2, 6, v0
v_and_b32 v1, 63, v0
v_readfirstlane_b32 s22, v2
s_and_b32 s27, s2, 7
s_lshr_b32 s28, s2, 3
s_and_b32 s23, s28, 1
s_lshl1_add_u32 s23, s27, s23
s_lshr_b32 s24, s28, 1""")
    k("""v_lshrrev_b32 v3, 3, v1
v_and_b32 v4, 7, v1
s_lshl_b32 s27, s23, 7
s_lshl_b32 s28, s22, 5
s_add_u32 s27, s27, s28""")
    for a in range(4):
        k(f"""v_add_u32 v5, {8*a}, v3
v_bfe_u32 v6, v5, 1, 3
v_xor_b32 v6, v6, v4
v_add_u32 v5, s27, v5
v_lshlrev_b32 v5, 10, v5
v_lshl_add_u32 v5, v6, 4, v5
v_subrev_u32 v{VOX+a}, {1024*a}, v5""")
    k("""s_lshl_b32 s27, s24, 6
s_mul_i32 s28, s22, 49152
s_add_u32 s27, s27, s28
v_and_b32 v7, 3, v1
v_lshlrev_b32 v7, 4, v7
v_lshrrev_b32 v8, 2, v1""")
    for b in range(3):
        k(f"""v_add_u32 v5, {16*b}, v8
v_mul_u32_u24 v6, 171, v5
v_lshrrev_b32 v6, 9, v6
v_mul_u32_u24 v9, 3, v6
v_sub_u32 v9, v5, v9
v_mul_u32_u24 v6, 3072, v6
v_lshl_add_u32 v6, v9, 10, v6
v_add3_u32 v6, v6, v7, s27
v_subrev_u32 v{VOW+b}, {1024*b}, v6""")
    k("""v_and_b32 v5, 31, v1
v_lshrrev_b32 v6, 5, v1
v_bfe_u32 v7, v5, 1, 3
s_lshl_b32 s25, s22, 12
v_lshlrev_b32 v8, 7, v5
v_add_u32 v8, s25, v8""")
    for t in range(4):
        k(f"""v_add_u32 v9, {2*t}, v6
v_xor_b32 v9, v9, v7
v_lshl_add_u32 v{XRD+t}, v9, 4, v8""")
    k(f"""v_bfe_u32 v7, v1, 2, 2
v_lshl_add_u32 v7, v6, 3, v7
v_mul_u32_u24 v7, 192, v7
v_bfe_u32 v8, v1, 4, 1
v_lshl_add_u32 v7, v8, 5, v7
v_and_b32 v8, 1, v1
v_lshl_add_u32 v7, v8, 4, v7
v_bfe_u32 v8, v1, 1, 1
v_lshl_add_u32 v{WRD}, v8, 3, v7
v_mov_b32 v{ONES}, 0x3f803f80
v_mov_b32 v96, 0
v_mov_b32 v97, 0
v_mov_b32 v98, 0
v_mov_b32 v99, 0
v_mov_b32 v100, 0
v_mov_b32 v101, 0
v_mov_b32 v102, 0
s_mul_i32 s26, s22, 3072
s_add_u32 s26, s26, 16384
s_waitcnt lgkmcnt(0)""")
    k.srd(8,4,2*MB); k.srd(12,6,512*3072); k.srd(16,20,WS_SIZE)
    def dma_ops(i):
        sl=i%NS; ops=[]
        for a in range(4):
            pre=f"s_add_u32 m0, s25, {sl*CH}\ns_mov_b32 s27, {i*128}\n" if a==0 else ""
            ops.append((pre+f"buffer_load_dwordx4 v{VOX+a}, s[8:11], s27 offen offset:{1024*a} lds",f"c{i}"))
        for b in range(3):
            pre=f"s_add_u32 m0, s26, {sl*CH}\ns_mov_b32 s28, {i*196608}\n" if b==0 else ""
            ops.append((pre+f"buffer_load_dwordx4 v{VOW+b}, s[12:15], s28 offen offset:{1024*b} lds",f"c{i}"))
        return ops
    for i in range(NS):
        for t,tag in dma_ops(i): k.vmem(t,tag)
    base=[0]
    def set_base(i):
        want=(i%NS)//2*2*CH
        if want!=base[0]:
            d=want-base[0]
            for r in [XRD,XRD+1,XRD+2,XRD+3,WRD]:
                k(f"v_add_u32 v{r}, {hex(d & 0xffffffff)}, v{r}")
            base[0]=want
    def reads(s):
        i,t=divmod(s,4); p=s&1; off=(i%NS)*CH-base[0]
        r=[f"ds_read_b128 v[{XF(p)}:{XF(p)+3}], v{XRD+t} offset:{off}"]
        for u in range(3):
            for e in range(2):
                r.append(f"ds_read_b64_tr_b16 v[{WF(p,u)+2*e}:{WF(p,u)+2*e+1}], v{WRD} offset:{off+16384+(16*t+4*e)*192+u*64}")
        return r
    k.wait_vm('c0'); k("s_barrier")
    k.stamp(1,30)
    for r in reads(0): k.ds(r)
    pend=[]
    for s in range(32):
        i,t=divmod(s,4); p=s&1
        k.wait_lg()
        def mf(u):
            acc=[accQ,accK,accV][u]
            c="0" if s==0 else f"v[{acc}:{acc+15}]"
            w=f"v[{WF(p,u)}:{WF(p,u)+3}]"; x=f"v[{XF(p)}:{XF(p)+3}]"
            if u<2: k(f"v_mfma_f32_32x32x16_bf16 v[{acc}:{acc+15}], {w}, {x}, {c}")
            else:   k(f"v_mfma_f32_32x32x16_bf16 v[{acc}:{acc+15}], {x}, {w}, {c}")
        mf(0)
        if t==3 and i<7:
            if f"c{i+1}" in k.vm: k.wait_vm(f"c{i+1}")
            if not os.environ.get('NOBAR'): k("s_barrier")
            if i+NS<=7 and not os.environ.get('NODMA'): pend+=dma_ops(i+NS)
            set_base(i+1)
        nxt=reads(s+1) if s<31 else []
        if os.environ.get('NOREAD'): nxt=[]
        if os.environ.get('NOTR'): nxt=nxt[:1]
        if os.environ.get('NOXR'): nxt=nxt[1:]
        for r in nxt[:4]: k.ds(r)
        mf(1)
        for r in nxt[4:]: k.ds(r)
        for _ in range(2):
            if pend:
                tx,tag=pend.pop(0); k.vmem(tx,tag)
        mf(2)
        if NODOT: continue
        for j in range(4):
            k(f"v_dot2_f32_bf16 v{S2[j&1]}, v{XF(p)+j}, v{XF(p)+j}, v{S2[j&1]}")
            k(f"v_dot2_f32_bf16 v{S1[j&1]}, v{XF(p)+j}, v{ONES}, v{S1[j&1]}")
        k(f"s_cmp_lg_u32 s22, {t}")
        k(f"s_cbranch_scc1 {k.L(f'cs{s}')}")
        for j in range(4):
            for u in range(3):
                k(f"v_dot2_f32_bf16 v{CSA[u]}, v{WF(p,u)+j}, v{ONES}, v{CSA[u]}")
        k.label(f'cs{s}')
    assert not pend
    k.stamp(2,30)
    k("""v_and_b32 v5, 31, v1
v_lshrrev_b32 v6, 5, v1
s_lshl_b32 s27, s23, 7
s_lshl_b32 s28, s22, 5
s_add_u32 s27, s27, s28
v_add_u32 v7, s27, v5
v_lshlrev_b32 v7, 10, v7
v_lshl_add_u32 v7, v6, 4, v7
s_lshl_b32 s28, s24, 6""")
    k.vmem("buffer_load_dwordx4 v[64:67], v7, s[8:11], s28 offen",'x0')
    k.vmem("buffer_load_dwordx4 v[68:71], v7, s[8:11], s28 offen offset:32",'x0')
    k(f"""v_add_f32 v96, v96, v97
v_add_f32 v98, v98, v99
v_mov_b32 v97, v96
v_mov_b32 v99, v98
v_permlane32_swap_b32 v96, v97
v_permlane32_swap_b32 v98, v99
v_add_f32 v96, v96, v97
v_add_f32 v98, v98, v99
v_mul_f32 v98, {fhex(1/512)}, v98
v_mul_f32 v96, {fhex(1/512)}, v96
v_fma_f32 v96, -v98, v98, v96
v_add_f32 v96, {fhex(EPS)}, v96
v_rsq_f32 v96, v96""")
    k("""s_mul_i32 s27, s22, 768
v_lshl_add_u32 v8, v1, 2, s27""")
    for u in range(3): k.ds(f"ds_write_b32 v8, v{CSA[u]} offset:{u*256}")
    k("""s_lshl_b32 s27, s22, 8
v_lshl_add_u32 v9, v5, 2, s27""")
    k.ds("ds_write_b32 v9, v98 offset:8192")
    k.ds("ds_write_b32 v9, v96 offset:8320")
    k.wait_lg(); k("s_barrier")
    k(f"""v_cmp_gt_u32 vcc, 96, v0
s_and_saveexec_b64 s[28:29], vcc
s_cbranch_execz {k.L('nocs')}
v_lshrrev_b32 v8, 5, v0
v_and_b32 v9, 31, v0
v_lshlrev_b32 v10, 2, v9
v_lshl_add_u32 v10, v8, 8, v10""")
    for w in range(4):
        k.ds(f"ds_read_b32 v{72+2*w}, v10 offset:{w*768}")
        k.ds(f"ds_read_b32 v{73+2*w}, v10 offset:{w*768+128}")
    k.wait_lg()
    k("""v_add_f32 v72, v72, v73
v_add_f32 v74, v74, v75
v_add_f32 v76, v76, v77
v_add_f32 v78, v78, v79
v_add_f32 v72, v72, v74
v_add_f32 v76, v76, v78
v_add_f32 v72, v72, v76
v_lshlrev_b32 v10, 2, v0""")
    k.ds("ds_write_b32 v10, v72 offset:4096")
    k(f"""s_cmp_lg_u32 s23, 0
s_cbranch_scc1 {k.L('nocs')}
v_lshlrev_b32 v10, 2, v9
v_lshl_add_u32 v10, v8, 11, v10
s_lshl_b32 s27, s24, 7
s_add_u32 s27, s27, {hex(WS_CS)}""")
    k("buffer_store_dword v72, v10, s[16:19], s27 offen")
    k.label('nocs')
    k("s_mov_b64 exec, s[28:29]")
    k.wait_lg(); k("s_barrier")
    k("""v_lshlrev_b32 v8, 4, v6
v_and_b32 v9, 31, v1
v_lshlrev_b32 v9, 2, v9""")
    for q in range(4):
        k.ds(f"ds_read_b128 v[{72+4*q}:{75+4*q}], v8 offset:{4096+q*32}")
    for q in range(4):
        k.ds(f"ds_read_b128 v[{104+4*q}:{107+4*q}], v8 offset:{4096+128+q*32}")
    k.ds("ds_read_b32 v103, v9 offset:4352")
    k("s_lshl_b32 s27, s22, 8\nv_add_u32 v8, s27, v8")
    for q in range(4):
        k.ds(f"ds_read_b128 v[{120+4*q}:{123+4*q}], v8 offset:{8192+q*32}")
    k.wait_lg()
    for q in range(4):
        k.ds(f"ds_read_b128 v[{136+4*q}:{139+4*q}], v8 offset:{8320+q*32}")
    k(f"""v_mul_f32 v10, {fhex(QSCALE)}, v96
v_mul_f32 v11, v10, v98
v_mul_f32 v12, v96, v98""")
    k.wait_lg()
    for r in range(16):
        k(f"v_mul_f32 v{accQ+r}, v10, v{accQ+r}")
        k(f"v_fma_f32 v{accQ+r}, -v11, v{72+r}, v{accQ+r}")
    for r in range(16):
        k(f"v_mul_f32 v{accK+r}, v96, v{accK+r}")
        k(f"v_fma_f32 v{accK+r}, -v12, v{104+r}, v{accK+r}")
    for r in range(16):
        k(f"v_fma_f32 v{accV+r}, -v{120+r}, v103, v{accV+r}")
        k(f"v_mul_f32 v{accV+r}, v{136+r}, v{accV+r}")
    for acc,dst in ((accQ,72),(accK,80),(accV,88)):
        for j in range(8):
            k(f"v_cvt_pk_bf16_f32 v{dst+j}, v{acc+2*j}, v{acc+2*j+1}")
    k(f"""s_lshl_b32 s27, s23, 2
s_add_u32 s27, s27, s22
s_lshl_b32 s28, s24, 7
s_add_u32 s28, s28, s27
s_lshl_b32 s28, s28, 10
v_lshlrev_b32 v8, 4, v1
s_add_u32 s46, s28, {hex(WS_Q[0])}
s_add_u32 s47, s28, {hex(WS_Q[0]+65536)}
s_add_u32 s48, s28, {hex(WS_K[0])}
s_add_u32 s49, s28, {hex(WS_K[0]+65536)}
s_add_u32 s50, s28, {hex(WS_V[0])}""")
    k.vmem("buffer_store_dwordx4 v[72:75], v8, s[16:19], s46 offen",'st')
    k.vmem("buffer_store_dwordx4 v[76:79], v8, s[16:19], s47 offen",'st')
    k.vmem("buffer_store_dwordx4 v[80:83], v8, s[16:19], s48 offen",'st')
    k.vmem("buffer_store_dwordx4 v[84:87], v8, s[16:19], s49 offen",'st')
    k("""v_bfe_u32 v9, v1, 4, 1
v_lshlrev_b32 v9, 16, v9
v_lshl_add_u32 v9, v6, 8, v9
v_and_b32 v10, 15, v1
v_lshl_add_u32 v9, v10, 4, v9""")
    k.vmem("buffer_store_dwordx4 v[88:91], v9, s[16:19], s50 offen",'st')
    k.vmem("buffer_store_dwordx4 v[92:95], v9, s[16:19], s50 offen offset:512",'st')
    k(f"""s_lshl_b32 s27, s27, 5
s_lshl_b32 s28, s24, 1
s_add_u32 s27, s27, s28
s_lshl_b32 s27, s27, 10
s_add_u32 s27, s27, {hex(WS_X0F)}
s_waitcnt vmcnt(6)""")
    k("""buffer_store_dwordx4 v[64:67], v8, s[16:19], s27 offen
buffer_store_dwordx4 v[68:71], v8, s[16:19], s27 offen offset:1024""")
    k(f"""v_cmp_gt_u32 vcc, 12, v0
s_and_saveexec_b64 s[28:29], vcc
s_cbranch_execz {k.L('nz')}
v_mov_b32 v72, 0
v_mov_b32 v73, 0
v_mov_b32 v74, 0
v_mov_b32 v75, 0
s_mul_i32 s27, s2, 192
v_lshlrev_b32 v8, 4, v0""")
    k(f"""s_cmp_ge_u32 s2, 128
s_mov_b32 s46, {hex(WS_ST[0])}
s_cselect_b32 s46, {hex(WS_ST[1]-24576)}, s46
s_add_u32 s27, s27, s46
buffer_store_dwordx4 v[72:75], v8, s[16:19], s27 offen""")
    k.label('nz')
    k("s_mov_b64 exec, s[28:29]")
    if prof:
        k("s_waitcnt vmcnt(0)"); k.stamp(3,30); k.stamp_flush(4,30,16,72,22)
    k.dbg_end()
    k.label('end')
    k("s_endpgm")
    return k, k.kd(152,64,152), ((256,1,1),(256,1,1),NS*CH)
```

```python
import sys, importlib
sys.path.insert(0,'gen')
from common import *
HEADER=open('interleave_layers__sliding_block__moe_arch_mod__prompt.s.ref').read().split('; Override launch')[0]

def assemble(kernels):
    out=HEADER
    for k,kd,(g,b,lds) in kernels:
        out+=f"; @launch kernel={k.name} grid=({g[0]},{g[1]},{g[2]}) block=({b[0]},{b[1]},{b[2]}) lds={lds}\n"
    out+='.amdgcn_target "amdgcn-amd-amdhsa--gfx950"\n.text\n'
    for k,kd,_ in kernels: out+=k.text()
    out+='all_code_end:\n  s_endpgm\n'
    out+='.section .rodata,"a"\n'
    for k,kd,_ in kernels: out+='.p2align 6\n'+kd
    return out

def all_kernels(prof=False, upto=99):
    ks=[]
    from k_qkv1 import gen_qkv1
    ks.append(gen_qkv1(prof,0))
    mods=[('k_attn','gen_attn',dict(layer=0)),('k_wo','gen_wo',dict(layer=0)),('k_qkv2','gen_qkv2',{}),
          ('k_attn','gen_attn',dict(layer=1)),('k_wo','gen_wo',dict(layer=1)),('k_tail','gen_tail',{})]
    for i,(m,f,kw) in enumerate(mods):
        if len(ks)>=upto: break
        try: mod=importlib.import_module(m)
        except ModuleNotFoundError: break
        if not hasattr(mod,f): break
        ks.append(getattr(mod,f)(prof,i+1,**kw))
    return ks

if __name__=='__main__':
    prof='--prof' in sys.argv
    out=[a for a in sys.argv[1:] if not a.startswith('--')]
    path=out[0] if out else 'interleave_layers__sliding_block__moe_arch_mod__prompt.s'
    txt=assemble(all_kernels(prof))
    open(path,'w').write(txt)
    print('wrote',path,len(txt),'bytes')
```

```python
from asmfw import *
import struct
def f2u(x): return struct.unpack('<I', struct.pack('<f', x))[0]
def fhex(x): return hex(f2u(x))

MB=1<<20
WS_Q=[0*MB, 8*MB]; WS_K=[2*MB,10*MB]; WS_V=[4*MB,12*MB]; WS_O=[6*MB,14*MB]
WS_X0F=16*MB; WS_X1F=18*MB; WS_X3F=20*MB
SMALL=22*MB
WS_ST=[SMALL+0, SMALL+0x8000]
WS_CS=SMALL+0x10000
WS_SEL=[SMALL+0x12000, SMALL+0x12100]
WS_X2S=SMALL+0x13000
WS_PART=[SMALL+0x20000, SMALL+0x40000]
WS_TS=SMALL+0x100000
WS_SIZE=0x10000000
EPS=1e-5
QSCALE=0.25*1.4426950408889634

import os
DBGTS=bool(os.environ.get('DBGTS'))
DBGWG=int(os.environ.get('DBGWG','0'))
class KB:
    def __init__(self,name,prof=False,kidx=0):
        self.name=name; self.a=Asm(); self.vm=[]; self.lg=[]; self.prof=prof; self.kidx=kidx
    def __call__(self,t): self.a(t)
    def label(self,n): self.a.label(self.name+'_'+n)
    def L(self,n): return self.name+'_'+n
    def vmem(self,t,tag):
        self.a(t); self.vm.append(tag); assert len(self.vm)<=63, "too many vmem in flight"
    def wait_vm(self,tag):
        idx=max(i for i,t in enumerate(self.vm) if t==tag)
        n=len(self.vm)-1-idx
        self.a(f"s_waitcnt vmcnt({n})"); self.vm=self.vm[idx+1:]
    def wait_vm_all(self):
        self.a("s_waitcnt vmcnt(0)"); self.vm=[]
    def ds(self,t,tag='x'):
        self.a(t); self.lg.append(tag)
    def wait_lg(self,tag=None):
        if tag is None or tag not in self.lg:
            if tag is None:
                self.a("s_waitcnt lgkmcnt(0)"); self.lg=[]
            return
        idx=max(i for i,t in enumerate(self.lg) if t==tag)
        n=len(self.lg)-1-idx
        assert n<=15
        self.a(f"s_waitcnt lgkmcnt({n})"); self.lg=self.lg[idx+1:]
    def srd(self,s,ptr,size):
        self.a(f"""s_mov_b32 s{s}, s{ptr}
s_and_b32 s{s+1}, s{ptr+1}, 0xffff
s_mov_b32 s{s+2}, {hex(size)}
s_mov_b32 s{s+3}, 0x20000""")
    def dbg_begin(self):
        if not DBGTS: return
        self.a("s_memrealtime s[96:97]")
    def dbg_end(self):
        if not DBGTS: return
        self.a(f"""s_cmp_lg_u32 s2, {DBGWG}
s_cbranch_scc1 {self.L('dbgskip')}
s_memrealtime s[98:99]
s_load_dwordx2 s[94:95], s[0:1], 72
s_waitcnt lgkmcnt(0)
s_sub_u32 s94, s94, {512*self.kidx}
s_subb_u32 s95, s95, 0
s_add_u32 s94, s94, {8*self.kidx}
s_addc_u32 s95, s95, 0
v_mov_b32 v2, s96
v_mov_b32 v3, s98
v_mov_b32 v4, 0
v_cmp_eq_u32 vcc, 0, v0
s_and_saveexec_b64 s[92:93], vcc
s_cbranch_execz {self.L('dbgskip')}
global_store_dwordx2 v4, v[2:3], s[94:95]""")
        self.label('dbgskip')
    def header(self):
        return f".globl {self.name}\n.p2align 8\n.type {self.name},@function\n{self.name}:\n"
    def kd(self,vgpr,sgpr,accum):
        return f""".amdhsa_kernel {self.name}
  .amdhsa_next_free_vgpr {vgpr}
  .amdhsa_next_free_sgpr {100 if DBGTS else sgpr}
  .amdhsa_accum_offset {accum}
  .amdhsa_group_segment_fixed_size 0
  .amdhsa_kernarg_size 88
  .amdhsa_user_sgpr_count 2
  .amdhsa_user_sgpr_kernarg_segment_ptr 1
  .amdhsa_system_sgpr_workgroup_id_x 1
  .amdhsa_float_denorm_mode_32 3
.end_amdhsa_kernel
"""
    def stamp(self,slot,sreg):
        if not self.prof: return
        self.a(f"s_memrealtime s[{sreg+2*slot}:{sreg+2*slot+1}]")
    def stamp_flush(self,nslots,sreg,wsrd,vtmp,swave,swg='s2'):
        if not self.prof: return
        self.a(f"""s_waitcnt lgkmcnt(0)
s_cmp_lg_u32 s{swave}, 0
s_cbranch_scc1 {self.L('nostamp')}
s_lshl_b32 s{sreg+2*nslots}, {swg}, 6
s_add_u32 s{sreg+2*nslots}, s{sreg+2*nslots}, {hex(WS_TS+self.kidx*512*64)}
v_mov_b32 v{vtmp+2}, 0""")
        for i in range(nslots):
            self.a(f"""v_mov_b32 v{vtmp}, s{sreg+2*i}
v_mov_b32 v{vtmp+1}, s{sreg+2*i+1}
buffer_store_dwordx2 v[{vtmp}:{vtmp+1}], v{vtmp+2}, s[{wsrd}:{wsrd+3}], s{sreg+2*nslots} offen offset:{8*i}
s_nop 1""")
        self.label('nostamp')
    def text(self):
        return self.header()+self.a.finish()
```

```python
from asmfw import *
import struct
def f2u(x): return struct.unpack('<I', struct.pack('<f', x))[0]
def fhex(x): return hex(f2u(x))

MB=1<<20
WS_Q=[0*MB, 8*MB]; WS_K=[2*MB,10*MB]; WS_V=[4*MB,12*MB]; WS_O=[6*MB,14*MB]
WS_X0F=16*MB; WS_X1F=18*MB; WS_X3F=20*MB
SMALL=22*MB
WS_ST=[SMALL+0, SMALL+0x8000]
WS_CS=SMALL+0x10000
WS_SEL=[SMALL+0x12000, SMALL+0x12100]
WS_X2S=SMALL+0x13000
WS_PART=[SMALL+0x20000, SMALL+0x40000]
WS_TS=SMALL+0x100000
WS_SIZE=0x10000000
EPS=1e-5
QSCALE=0.25*1.4426950408889634

import os
DBGTS=bool(os.environ.get('DBGTS'))
DBGWG=int(os.environ.get('DBGWG','0'))
NLAUNCH=int(os.environ.get('NLAUNCH','8'))
class KB:
    def __init__(self,name,prof=False,kidx=0):
        self.name=name; self.a=Asm(); self.vm=[]; self.lg=[]; self.prof=prof; self.kidx=kidx
    def __call__(self,t): self.a(t)
    def label(self,n): self.a.label(self.name+'_'+n)
    def L(self,n): return self.name+'_'+n
    def vmem(self,t,tag):
        self.a(t); self.vm.append(tag); assert len(self.vm)<=63, "too many vmem in flight"
    def wait_vm(self,tag):
        idx=max(i for i,t in enumerate(self.vm) if t==tag)
        n=len(self.vm)-1-idx
        self.a(f"s_waitcnt vmcnt({n})"); self.vm=self.vm[idx+1:]
    def wait_vm_all(self):
        self.a("s_waitcnt vmcnt(0)"); self.vm=[]
    def ds(self,t,tag='x'):
        self.a(t); self.lg.append(tag)
    def wait_lg(self,tag=None):
        if tag is None or tag not in self.lg:
            if tag is None:
                self.a("s_waitcnt lgkmcnt(0)"); self.lg=[]
            return
        idx=max(i for i,t in enumerate(self.lg) if t==tag)
        n=len(self.lg)-1-idx
        assert n<=15
        self.a(f"s_waitcnt lgkmcnt({n})"); self.lg=self.lg[idx+1:]
    def srd(self,s,ptr,size):
        self.a(f"""s_mov_b32 s{s}, s{ptr}
s_and_b32 s{s+1}, s{ptr+1}, 0xffff
s_mov_b32 s{s+2}, {hex(size)}
s_mov_b32 s{s+3}, 0x20000""")
    def dbg_begin(self):
        if not DBGTS: return
        self.a("s_memrealtime s[96:97]")
    def dbg_end(self):
        if not DBGTS: return
        last = (self.kidx==NLAUNCH-1)
        self.a(f"""s_cmp_lg_u32 s2, {DBGWG if not last else 0}
s_cbranch_scc1 {self.L('dbgskip')}
s_memrealtime s[98:99]
s_load_dwordx2 s[94:95], s[0:1], 80
s_waitcnt lgkmcnt(0)
s_add_u32 s94, s94, {hex(WS_TS+0x80000)}
s_addc_u32 s95, s95, 0
v_mov_b32 v2, s96
v_mov_b32 v3, s98
v_mov_b32 v4, {8*self.kidx}
v_cmp_eq_u32 vcc, 0, v0
s_and_saveexec_b64 s[92:93], vcc
s_cbranch_execz {self.L('dbgskip')}
global_store_dwordx2 v4, v[2:3], s[94:95] sc1""")
        if last:
            self.a("""s_waitcnt vmcnt(0)
s_mov_b64 exec, 0xffff
v_lshlrev_b32 v4, 2, v0
global_load_dword v2, v4, s[94:95] sc1
s_load_dwordx2 s[94:95], s[0:1], 72
s_waitcnt vmcnt(0) lgkmcnt(0)""")
            for i in range(NLAUNCH):
                self.a(f"global_store_dword v4, v2, s[94:95]\ns_sub_u32 s94, s94, 512\ns_subb_u32 s95, s95, 0")
        self.label('dbgskip')
    def header(self):
        return f".globl {self.name}\n.p2align 8\n.type {self.name},@function\n{self.name}:\n"
    def kd(self,vgpr,sgpr,accum):
        return f""".amdhsa_kernel {self.name}
  .amdhsa_next_free_vgpr {vgpr}
  .amdhsa_next_free_sgpr {100 if DBGTS else sgpr}
  .amdhsa_accum_offset {accum}
  .amdhsa_group_segment_fixed_size 0
  .amdhsa_kernarg_size 88
  .amdhsa_user_sgpr_count 2
  .amdhsa_user_sgpr_kernarg_segment_ptr 1
  .amdhsa_system_sgpr_workgroup_id_x 1
  .amdhsa_float_denorm_mode_32 3
.end_amdhsa_kernel
"""
    def stamp(self,slot,sreg):
        if not self.prof: return
        self.a(f"s_memrealtime s[{sreg+2*slot}:{sreg+2*slot+1}]")
    def stamp_flush(self,nslots,sreg,wsrd,vtmp,swave,swg='s2'):
        if not self.prof: return
        self.a(f"""s_waitcnt lgkmcnt(0)
s_cmp_lg_u32 s{swave}, 0
s_cbranch_scc1 {self.L('nostamp')}
s_lshl_b32 s{sreg+2*nslots}, {swg}, 6
s_add_u32 s{sreg+2*nslots}, s{sreg+2*nslots}, {hex(WS_TS+self.kidx*512*64)}
v_mov_b32 v{vtmp+2}, 0""")
        for i in range(nslots):
            self.a(f"""v_mov_b32 v{vtmp}, s{sreg+2*i}
v_mov_b32 v{vtmp+1}, s{sreg+2*i+1}
buffer_store_dwordx2 v[{vtmp}:{vtmp+1}], v{vtmp+2}, s[{wsrd}:{wsrd+3}], s{sreg+2*nslots} offen offset:{8*i}
s_nop 1""")
        self.label('nostamp')
    def text(self):
        return self.header()+self.a.finish()
```

```python
from asmfw import *
import struct
def f2u(x): return struct.unpack('<I', struct.pack('<f', x))[0]
def fhex(x): return hex(f2u(x))

MB=1<<20
WS_Q=[0*MB, 8*MB]; WS_K=[2*MB,10*MB]; WS_V=[4*MB,12*MB]; WS_O=[6*MB,14*MB]
WS_X0F=16*MB; WS_X1F=18*MB; WS_X3F=20*MB
SMALL=22*MB
WS_ST=[SMALL+0, SMALL+0x6000]
WS_CS=SMALL+0x14000
WS_SEL=[SMALL+0x16000, SMALL+0x16100]
WS_X2S=SMALL+0x17000
WS_YACC=[SMALL+0xC000, SMALL+0x10000]
WS_WH=24*MB
WS_TS=SMALL+0x100000
WS_SIZE=0x10000000
EPS=1e-5
QSCALE=0.25*1.4426950408889634

import os
DBGTS=bool(os.environ.get('DBGTS'))
DBGWG=int(os.environ.get('DBGWG','0'))
NLAUNCH=int(os.environ.get('NLAUNCH','8'))
STF=os.environ.get('STF',' sc1')
class KB:
    def __init__(self,name,prof=False,kidx=0):
        self.name=name; self.a=Asm(); self.vm=[]; self.lg=[]; self.prof=prof; self.kidx=kidx
    def __call__(self,t): self.a(t)
    def label(self,n): self.a.label(self.name+'_'+n)
    def L(self,n): return self.name+'_'+n
    def vmem(self,t,tag):
        self.a(t); self.vm.append(tag); assert len(self.vm)<=63, "too many vmem in flight"
    def wait_vm(self,tag):
        idx=max(i for i,t in enumerate(self.vm) if t==tag)
        n=len(self.vm)-1-idx
        self.a(f"s_waitcnt vmcnt({n})"); self.vm=self.vm[idx+1:]
    def wait_vm_all(self):
        self.a("s_waitcnt vmcnt(0)"); self.vm=[]
    def ds(self,t,tag='x'):
        self.a(t); self.lg.append(tag)
    def wait_lg(self,tag=None):
        if tag is None or tag not in self.lg:
            if tag is None:
                self.a("s_waitcnt lgkmcnt(0)"); self.lg=[]
            return
        idx=max(i for i,t in enumerate(self.lg) if t==tag)
        n=len(self.lg)-1-idx
        assert n<=15
        self.a(f"s_waitcnt lgkmcnt({n})"); self.lg=self.lg[idx+1:]
    def srd(self,s,ptr,size):
        self.a(f"""s_mov_b32 s{s}, s{ptr}
s_and_b32 s{s+1}, s{ptr+1}, 0xffff
s_mov_b32 s{s+2}, {hex(size)}
s_mov_b32 s{s+3}, 0x20000""")
    def dbg_begin(self):
        if not DBGTS: return
        self.a("s_memrealtime s[96:97]")
    def dbg_end(self):
        if not DBGTS: return
        last = (self.kidx==NLAUNCH-1)
        self.a(f"""s_cmp_lg_u32 s2, {DBGWG if not last else 0}
s_cbranch_scc1 {self.L('dbgskip')}
s_memrealtime s[98:99]
s_load_dwordx2 s[94:95], s[0:1], 80
s_waitcnt lgkmcnt(0)
s_add_u32 s94, s94, {hex(WS_TS+0x80000)}
s_addc_u32 s95, s95, 0
v_mov_b32 v2, s96
v_mov_b32 v3, s98
v_mov_b32 v4, {8*self.kidx}
v_cmp_eq_u32 vcc, 0, v0
s_and_saveexec_b64 s[92:93], vcc
s_cbranch_execz {self.L('dbgskip')}
global_store_dwordx2 v4, v[2:3], s[94:95] sc1""")
        if last:
            self.a("""s_waitcnt vmcnt(0)
s_mov_b64 exec, 0xffff
v_lshlrev_b32 v4, 2, v0
global_load_dword v2, v4, s[94:95] sc1
s_load_dwordx2 s[94:95], s[0:1], 72
s_waitcnt vmcnt(0) lgkmcnt(0)""")
            for i in range(NLAUNCH):
                self.a(f"global_store_dword v4, v2, s[94:95]\ns_sub_u32 s94, s94, 512\ns_subb_u32 s95, s95, 0")
        self.label('dbgskip')
    def touch_lin(self,srd,vtmp,vdst,lane,sslot,nlines,sbase,stmp,tag=None):
        n=nlines; off=0
        self.a(f"s_mul_i32 s{stmp}, s{sslot}, {nlines*128}\ns_add_u32 s{stmp}, s{stmp}, {sbase}\nv_lshlrev_b32 v{vtmp}, 7, v{lane}")
        while n>0:
            m=min(n,64)
            if m<64: self.a(f"s_mov_b32 exec_lo, {hex((1<<min(m,32))-1)}\ns_mov_b32 exec_hi, {hex((1<<max(m-32,0))-1)}")
            t=f"buffer_load_dword v{vdst}, v{vtmp}, s[{srd}:{srd+3}], s{stmp} offen"
            if tag: self.vmem(t,tag)
            else: self.a(t)
            if m<64: self.a("s_mov_b64 exec, -1")
            n-=m; off+=m
            if n>0: self.a(f"s_add_u32 s{stmp}, s{stmp}, {64*128}")
    def header(self):
        return f".globl {self.name}\n.p2align 8\n.type {self.name},@function\n{self.name}:\n"
    def kd(self,vgpr,sgpr,accum):
        return f""".amdhsa_kernel {self.name}
  .amdhsa_next_free_vgpr {vgpr}
  .amdhsa_next_free_sgpr {100 if DBGTS else sgpr}
  .amdhsa_accum_offset {accum}
  .amdhsa_group_segment_fixed_size 0
  .amdhsa_kernarg_size 88
  .amdhsa_user_sgpr_count 2
  .amdhsa_user_sgpr_kernarg_segment_ptr 1
  .amdhsa_system_sgpr_workgroup_id_x 1
  .amdhsa_float_denorm_mode_32 3
.end_amdhsa_kernel
"""
    def stamp(self,slot,sreg):
        if not self.prof: return
        self.a(f"s_memrealtime s[{sreg+2*slot}:{sreg+2*slot+1}]")
    def stamp_flush(self,nslots,sreg,wsrd,vtmp,swave,swg='s2'):
        if not self.prof: return
        self.a(f"""s_waitcnt lgkmcnt(0)
s_cmp_lg_u32 s{swave}, 0
s_cbranch_scc1 {self.L('nostamp')}
s_lshl_b32 s{sreg+2*nslots}, {swg}, 6
s_add_u32 s{sreg+2*nslots}, s{sreg+2*nslots}, {hex(WS_TS+self.kidx*512*64)}
v_mov_b32 v{vtmp+2}, 0""")
        for i in range(nslots):
            self.a(f"""v_mov_b32 v{vtmp}, s{sreg+2*i}
v_mov_b32 v{vtmp+1}, s{sreg+2*i+1}
buffer_store_dwordx2 v[{vtmp}:{vtmp+1}], v{vtmp+2}, s[{wsrd}:{wsrd+3}], s{sreg+2*nslots} offen offset:{8*i}
s_nop 1""")
        self.label('nostamp')
    def text(self):
        t=self.a.finish()
        out=[]
        for ln in t.split('\n'):
            st=ln.strip()
            if st.startswith('buffer_store') and 'sc1' not in st and 'dwordx2' not in st: ln=ln+STF
            out.append(ln)
        return self.header()+'\n'.join(out)
```

```python
from common import *

import os
def gen_qkv1(prof=False,kidx=0,NS=int(os.environ.get('NS','4'))):
    NODOT=os.environ.get("NODOT")
    k=KB('qkv1_kernel',prof,kidx)
    CH=28672
    accQ,accK,accV=16,32,48
    WF=lambda p,u: 64+12*p+4*u
    XF=lambda p: 88+4*p
    S2=[96,97]; S1=[98,99]; CSA=[100,101,102]
    VOX=104; VOW=108; XRD=112; WRD=116; ONES=117
    k("s_cmp_ge_u32 s2, 256")
    k(f"s_cbranch_scc1 {k.L('end')}")
    k.stamp(0,30)
    k.dbg_begin()
    k("""s_load_dwordx4 s[4:7], s[0:1], 0
s_load_dwordx2 s[20:21], s[0:1], 80
v_lshrrev_b32 v2, 6, v0
v_and_b32 v1, 63, v0
v_readfirstlane_b32 s22, v2
s_and_b32 s27, s2, 7
s_lshr_b32 s28, s2, 3
""")
    if os.environ.get('MAP42'):
        k("""s_lshr_b32 s23, s27, 1
s_lshl_b32 s23, s23, 2
s_and_b32 s29, s28, 3
s_add_u32 s23, s23, s29
s_and_b32 s24, s27, 1
s_lshl_b32 s24, s24, 3
s_lshr_b32 s29, s28, 2
s_add_u32 s24, s24, s29""")
    else:
        k("""s_and_b32 s23, s28, 1
s_lshl1_add_u32 s23, s27, s23
s_lshr_b32 s24, s28, 1""")
    k("""v_lshrrev_b32 v3, 3, v1
v_and_b32 v4, 7, v1
s_lshl_b32 s27, s23, 7
s_lshl_b32 s28, s22, 5
s_add_u32 s27, s27, s28""")
    for a in range(4):
        k(f"""v_add_u32 v5, {8*a}, v3
v_bfe_u32 v6, v5, 1, 3
v_xor_b32 v6, v6, v4
v_add_u32 v5, s27, v5
v_lshlrev_b32 v5, 10, v5
v_lshl_add_u32 v5, v6, 4, v5
v_subrev_u32 v{VOX+a}, {1024*a}, v5""")
    k("""s_lshl_b32 s27, s24, 6
s_mul_i32 s28, s22, 49152
s_add_u32 s27, s27, s28
v_and_b32 v7, 3, v1
v_lshlrev_b32 v7, 4, v7
v_lshrrev_b32 v8, 2, v1""")
    for b in range(3):
        k(f"""v_add_u32 v5, {16*b}, v8
v_mul_u32_u24 v6, 171, v5
v_lshrrev_b32 v6, 9, v6
v_mul_u32_u24 v9, 3, v6
v_sub_u32 v9, v5, v9
v_mul_u32_u24 v6, 3072, v6
v_lshl_add_u32 v6, v9, 10, v6
v_add3_u32 v6, v6, v7, s27
v_subrev_u32 v{VOW+b}, {1024*b}, v6""")
    k("""v_and_b32 v5, 31, v1
v_lshrrev_b32 v6, 5, v1
v_bfe_u32 v7, v5, 1, 3
s_lshl_b32 s25, s22, 12
v_lshlrev_b32 v8, 7, v5
v_add_u32 v8, s25, v8""")
    for t in range(4):
        k(f"""v_add_u32 v9, {2*t}, v6
v_xor_b32 v9, v9, v7
v_lshl_add_u32 v{XRD+t}, v9, 4, v8""")
    k(f"""v_bfe_u32 v7, v1, 2, 2
v_lshl_add_u32 v7, v6, 3, v7
v_mul_u32_u24 v7, 192, v7
v_bfe_u32 v8, v1, 4, 1
v_lshl_add_u32 v7, v8, 5, v7
v_and_b32 v8, 1, v1
v_lshl_add_u32 v7, v8, 4, v7
v_bfe_u32 v8, v1, 1, 1
v_lshl_add_u32 v{WRD}, v8, 3, v7
v_mov_b32 v{ONES}, 0x3f803f80
v_mov_b32 v96, 0
v_mov_b32 v97, 0
v_mov_b32 v98, 0
v_mov_b32 v99, 0
v_mov_b32 v100, 0
v_mov_b32 v101, 0
v_mov_b32 v102, 0
s_mul_i32 s26, s22, 3072
s_add_u32 s26, s26, 16384
s_waitcnt lgkmcnt(0)""")
    k.srd(8,4,2*MB); k.srd(12,6,512*3072); k.srd(16,20,WS_SIZE)
    if os.environ.get('TOUCH'):
        k("""s_lshr_b32 s29, s2, 3
s_lshl_b32 s29, s29, 2
s_add_u32 s29, s29, s22
s_mul_i32 s46, s29, 12288
v_lshlrev_b32 v10, 7, v1
v_and_b32 v11, 31, v1
v_lshlrev_b32 v11, 7, v11
s_add_u32 s47, s46, 8192
s_and_b32 s48, s2, 7
s_lshl_b32 s48, s48, 18
s_lshl_b32 s49, s29, 11
s_add_u32 s48, s48, s49
v_and_b32 v12, 15, v1
v_lshlrev_b32 v12, 7, v12""")
        k.vmem("buffer_load_dword v13, v12, s[8:11], s48 offen",'touch')
        k.vmem("buffer_load_dword v14, v10, s[12:15], s46 offen",'touch')
        k.vmem("buffer_load_dword v15, v11, s[12:15], s47 offen",'touch')
    CODETOUCH=not os.environ.get('NOCODETOUCH')
    def code_touch():
        k(f"""s_getpc_b64 s[44:45]
{k.name}_pc:
s_and_b32 s45, s45, 0xffff
s_mov_b32 s46, (all_code_end-{k.name}_pc)
s_mov_b32 s47, 0x20000
s_lshr_b32 s48, s2, 3
s_lshl_b32 s48, s48, 2
s_add_u32 s48, s48, s22
s_mul_i32 s48, s48, 768
v_lshlrev_b32 v13, 7, v1
s_mov_b32 exec_lo, 0x3f
s_mov_b32 exec_hi, 0""")
        k.vmem("buffer_load_dword v14, v13, s[44:47], s48 offen",'touch')
        k("s_mov_b64 exec, -1")
    def dma_ops(i):
        sl=i%NS; ops=[]
        for a in range(4):
            pre=f"s_add_u32 m0, s25, {sl*CH}\ns_mov_b32 s27, {i*128}\n" if a==0 else ""
            ops.append((pre+f"buffer_load_dwordx4 v{VOX+a}, s[8:11], s27 offen offset:{1024*a} lds",f"c{i}"))
        for b in range(3):
            pre=f"s_add_u32 m0, s26, {sl*CH}\ns_mov_b32 s28, {i*196608}\n" if b==0 else ""
            ops.append((pre+f"buffer_load_dwordx4 v{VOW+b}, s[12:15], s28 offen offset:{1024*b} lds",f"c{i}"))
        return ops
    for i in range(NS):
        for t,tag in dma_ops(i): k.vmem(t,tag)
        if i==1 and CODETOUCH: code_touch()
    base=[0]
    def set_base(i):
        want=(i%NS)//2*2*CH
        if want!=base[0]:
            d=want-base[0]
            for r in [XRD,XRD+1,XRD+2,XRD+3,WRD]:
                k(f"v_add_u32 v{r}, {hex(d & 0xffffffff)}, v{r}")
            base[0]=want
    def reads(s):
        i,t=divmod(s,4); p=s&1; off=(i%NS)*CH-base[0]
        r=[f"ds_read_b128 v[{XF(p)}:{XF(p)+3}], v{XRD+t} offset:{off}"]
        for u in range(3):
            for e in range(2):
                r.append(f"ds_read_b64_tr_b16 v[{WF(p,u)+2*e}:{WF(p,u)+2*e+1}], v{WRD} offset:{off+16384+(16*t+4*e)*192+u*64}")
        return r
    k.wait_vm('c0'); k("s_barrier")
    k.stamp(1,30)
    for r in reads(0): k.ds(r)
    pend=[]
    for s in range(32):
        i,t=divmod(s,4); p=s&1
        k.wait_lg()
        def mf(u):
            acc=[accQ,accK,accV][u]
            c="0" if s==0 else f"v[{acc}:{acc+15}]"
            w=f"v[{WF(p,u)}:{WF(p,u)+3}]"; x=f"v[{XF(p)}:{XF(p)+3}]"
            if u<2: k(f"v_mfma_f32_32x32x16_bf16 v[{acc}:{acc+15}], {w}, {x}, {c}")
            else:   k(f"v_mfma_f32_32x32x16_bf16 v[{acc}:{acc+15}], {x}, {w}, {c}")
        mf(0)
        if t==3 and i<7:
            if f"c{i+1}" in k.vm: k.wait_vm(f"c{i+1}")
            if not os.environ.get('NOBAR'): k("s_barrier")
            if i+NS<=7 and not os.environ.get('NODMA'): pend+=dma_ops(i+NS)
            set_base(i+1)
        nxt=reads(s+1) if s<31 else []
        if os.environ.get('NOREAD'): nxt=[]
        if os.environ.get('NOTR'): nxt=nxt[:1]
        if os.environ.get('NOXR'): nxt=nxt[1:]
        for r in nxt[:4]: k.ds(r)
        mf(1)
        for r in nxt[4:]: k.ds(r)
        for _ in range(2):
            if pend:
                tx,tag=pend.pop(0); k.vmem(tx,tag)
        mf(2)
        if NODOT: continue
        for j in range(4):
            k(f"v_dot2_f32_bf16 v{S2[j&1]}, v{XF(p)+j}, v{XF(p)+j}, v{S2[j&1]}")
            k(f"v_dot2_f32_bf16 v{S1[j&1]}, v{XF(p)+j}, v{ONES}, v{S1[j&1]}")
        k(f"s_cmp_lg_u32 s22, {t}")
        k(f"s_cbranch_scc1 {k.L(f'cs{s}')}")
        for j in range(4):
            for u in range(3):
                k(f"v_dot2_f32_bf16 v{CSA[u]}, v{WF(p,u)+j}, v{ONES}, v{CSA[u]}")
        k.label(f'cs{s}')
    assert not pend
    k.stamp(2,30)
    k("""v_and_b32 v5, 31, v1
v_lshrrev_b32 v6, 5, v1
s_lshl_b32 s27, s23, 7
s_lshl_b32 s28, s22, 5
s_add_u32 s27, s27, s28
v_add_u32 v7, s27, v5
v_lshlrev_b32 v7, 10, v7
v_lshl_add_u32 v7, v6, 4, v7
s_lshl_b32 s28, s24, 6""")
    k.vmem("buffer_load_dwordx4 v[64:67], v7, s[8:11], s28 offen",'x0')
    k.vmem("buffer_load_dwordx4 v[68:71], v7, s[8:11], s28 offen offset:32",'x0')
    k(f"""v_add_f32 v96, v96, v97
v_add_f32 v98, v98, v99
v_mov_b32 v97, v96
v_mov_b32 v99, v98
v_permlane32_swap_b32 v96, v97
v_permlane32_swap_b32 v98, v99
v_add_f32 v96, v96, v97
v_add_f32 v98, v98, v99
v_mul_f32 v98, {fhex(1/512)}, v98
v_mul_f32 v96, {fhex(1/512)}, v96
v_fma_f32 v96, -v98, v98, v96
v_add_f32 v96, {fhex(EPS)}, v96
v_rsq_f32 v96, v96""")
    k("""s_mul_i32 s27, s22, 768
v_lshl_add_u32 v8, v1, 2, s27""")
    for u in range(3): k.ds(f"ds_write_b32 v8, v{CSA[u]} offset:{u*256}")
    k("""s_lshl_b32 s27, s22, 8
v_lshl_add_u32 v9, v5, 2, s27""")
    k.ds("ds_write_b32 v9, v98 offset:8192")
    k.ds("ds_write_b32 v9, v96 offset:8320")
    k.wait_lg(); k("s_barrier")
    k(f"""v_cmp_gt_u32 vcc, 96, v0
s_and_saveexec_b64 s[28:29], vcc
s_cbranch_execz {k.L('nocs')}
v_lshrrev_b32 v8, 5, v0
v_and_b32 v9, 31, v0
v_lshlrev_b32 v10, 2, v9
v_lshl_add_u32 v10, v8, 8, v10""")
    for w in range(4):
        k.ds(f"ds_read_b32 v{72+2*w}, v10 offset:{w*768}")
        k.ds(f"ds_read_b32 v{73+2*w}, v10 offset:{w*768+128}")
    k.wait_lg()
    k("""v_add_f32 v72, v72, v73
v_add_f32 v74, v74, v75
v_add_f32 v76, v76, v77
v_add_f32 v78, v78, v79
v_add_f32 v72, v72, v74
v_add_f32 v76, v76, v78
v_add_f32 v72, v72, v76
v_lshlrev_b32 v10, 2, v0""")
    k.ds("ds_write_b32 v10, v72 offset:4096")
    k(f"""s_cmp_lg_u32 s23, 0
s_cbranch_scc1 {k.L('nocs')}
v_lshlrev_b32 v10, 2, v9
v_lshl_add_u32 v10, v8, 11, v10
s_lshl_b32 s27, s24, 7
s_add_u32 s27, s27, {hex(WS_CS)}""")
    k("buffer_store_dword v72, v10, s[16:19], s27 offen")
    k.label('nocs')
    k("s_mov_b64 exec, s[28:29]")
    k.wait_lg(); k("s_barrier")
    k("""v_lshlrev_b32 v8, 4, v6
v_and_b32 v9, 31, v1
v_lshlrev_b32 v9, 2, v9""")
    for q in range(4):
        k.ds(f"ds_read_b128 v[{72+4*q}:{75+4*q}], v8 offset:{4096+q*32}")
    for q in range(4):
        k.ds(f"ds_read_b128 v[{104+4*q}:{107+4*q}], v8 offset:{4096+128+q*32}")
    k.ds("ds_read_b32 v103, v9 offset:4352")
    k("s_lshl_b32 s27, s22, 8\nv_add_u32 v8, s27, v8")
    for q in range(4):
        k.ds(f"ds_read_b128 v[{120+4*q}:{123+4*q}], v8 offset:{8192+q*32}")
    k.wait_lg()
    for q in range(4):
        k.ds(f"ds_read_b128 v[{136+4*q}:{139+4*q}], v8 offset:{8320+q*32}")
    k(f"""v_mul_f32 v10, {fhex(QSCALE)}, v96
v_mul_f32 v11, v10, v98
v_mul_f32 v12, v96, v98""")
    k.wait_lg()
    for r in range(16):
        k(f"v_mul_f32 v{accQ+r}, v10, v{accQ+r}")
        k(f"v_fma_f32 v{accQ+r}, -v11, v{72+r}, v{accQ+r}")
    for r in range(16):
        k(f"v_mul_f32 v{accK+r}, v96, v{accK+r}")
        k(f"v_fma_f32 v{accK+r}, -v12, v{104+r}, v{accK+r}")
    for r in range(16):
        k(f"v_fma_f32 v{accV+r}, -v{120+r}, v103, v{accV+r}")
        k(f"v_mul_f32 v{accV+r}, v{136+r}, v{accV+r}")
    for acc,dst in ((accQ,72),(accK,80),(accV,88)):
        for j in range(8):
            k(f"v_cvt_pk_bf16_f32 v{dst+j}, v{acc+2*j}, v{acc+2*j+1}")
    k(f"""s_lshl_b32 s27, s23, 2
s_add_u32 s27, s27, s22
s_lshl_b32 s28, s24, 7
s_add_u32 s28, s28, s27
s_lshl_b32 s28, s28, 10
v_lshlrev_b32 v8, 4, v1
s_add_u32 s46, s28, {hex(WS_Q[0])}
s_add_u32 s47, s28, {hex(WS_Q[0]+65536)}
s_add_u32 s48, s28, {hex(WS_K[0])}
s_add_u32 s49, s28, {hex(WS_K[0]+65536)}
s_add_u32 s50, s28, {hex(WS_V[0])}""")
    k.vmem("buffer_store_dwordx4 v[72:75], v8, s[16:19], s46 offen",'st')
    k.vmem("buffer_store_dwordx4 v[76:79], v8, s[16:19], s47 offen",'st')
    k.vmem("buffer_store_dwordx4 v[80:83], v8, s[16:19], s48 offen",'st')
    k.vmem("buffer_store_dwordx4 v[84:87], v8, s[16:19], s49 offen",'st')
    k("""v_bfe_u32 v9, v1, 4, 1
v_lshlrev_b32 v9, 16, v9
v_lshl_add_u32 v9, v6, 8, v9
v_and_b32 v10, 15, v1
v_lshl_add_u32 v9, v10, 4, v9""")
    k.vmem("buffer_store_dwordx4 v[88:91], v9, s[16:19], s50 offen",'st')
    k.vmem("buffer_store_dwordx4 v[92:95], v9, s[16:19], s50 offen offset:512",'st')
    k(f"""s_lshl_b32 s27, s27, 5
s_lshl_b32 s28, s24, 1
s_add_u32 s27, s27, s28
s_lshl_b32 s27, s27, 10
s_add_u32 s27, s27, {hex(WS_X0F)}
s_waitcnt vmcnt(6)""")
    k("""buffer_store_dwordx4 v[64:67], v8, s[16:19], s27 offen
buffer_store_dwordx4 v[68:71], v8, s[16:19], s27 offen offset:1024""")
    k(f"""v_cmp_gt_u32 vcc, 20, v0
s_and_saveexec_b64 s[28:29], vcc
s_cbranch_execz {k.L('nz')}
v_mov_b32 v72, 0
v_mov_b32 v73, 0
v_mov_b32 v74, 0
v_mov_b32 v75, 0
s_mul_i32 s27, s2, 320
v_lshlrev_b32 v8, 4, v0
s_add_u32 s27, s27, {hex(WS_ST[0])}
buffer_store_dwordx4 v[72:75], v8, s[16:19], s27 offen""")
    k.label('nz')
    k("s_mov_b64 exec, s[28:29]")
    if prof:
        k("s_waitcnt vmcnt(0)"); k.stamp(3,30); k.stamp_flush(4,30,16,72,22)
    k.dbg_end()
    k.label('end')
    k("s_endpgm")
    return k, k.kd(152,64,152), ((256,1,1),(256,1,1),NS*CH)
```

```python
from common import *
import os

def gen_qkv1(prof=False,kidx=0):
    k=KB('qkv1_kernel',prof,kidx)
    NS=5; CH=28672
    accQ,accK,accV=16,32,48
    CSA=lambda u:64+16*u; ONES=112
    WF=lambda p,u: 116+12*p+4*u
    XF=lambda p: 152+4*p
    VOX=164; VOW=168; XRD=171; WRD=175
    SCR=(NS-1)*CH
    LCS=NS*CH
    LRS=LCS+512
    LDS=LRS+1024
    nbar=[0]
    def bar():
        k("s_barrier"); nbar[0]+=1
    k("s_cmp_ge_u32 s2, 256")
    k(f"s_cbranch_scc1 {k.L('end')}")
    k.stamp(0,60)
    k.dbg_begin()
    k("""s_load_dwordx4 s[4:7], s[0:1], 0
s_load_dwordx2 s[20:21], s[0:1], 80
v_lshrrev_b32 v2, 6, v0
v_and_b32 v1, 63, v0
v_readfirstlane_b32 s22, v2
s_and_b32 s27, s2, 7
s_lshr_b32 s28, s2, 3""")
    k("""s_lshr_b32 s23, s27, 1
s_lshl_b32 s23, s23, 2
s_and_b32 s29, s28, 3
s_add_u32 s23, s23, s29
s_and_b32 s24, s27, 1
s_lshl_b32 s24, s24, 3
s_lshr_b32 s29, s28, 2
s_add_u32 s24, s24, s29""")
    k(f"s_cmp_ge_u32 s22, 4\ns_cbranch_scc1 {k.L('helper')}")
    k("""v_lshrrev_b32 v3, 3, v1
v_and_b32 v4, 7, v1
s_lshl_b32 s27, s23, 7
s_lshl_b32 s28, s22, 5
s_add_u32 s27, s27, s28""")
    for a in range(4):
        k(f"""v_add_u32 v5, {8*a}, v3
v_bfe_u32 v6, v5, 1, 3
v_xor_b32 v6, v6, v4
v_add_u32 v5, s27, v5
v_lshlrev_b32 v5, 10, v5
v_lshl_add_u32 v5, v6, 4, v5
v_subrev_u32 v{VOX+a}, {1024*a}, v5""")
    k("""s_lshl_b32 s27, s24, 6
s_mul_i32 s28, s22, 49152
s_add_u32 s27, s27, s28
v_and_b32 v7, 3, v1
v_lshlrev_b32 v7, 4, v7
v_lshrrev_b32 v8, 2, v1""")
    for b in range(3):
        k(f"""v_add_u32 v5, {16*b}, v8
v_mul_u32_u24 v6, 171, v5
v_lshrrev_b32 v6, 9, v6
v_mul_u32_u24 v9, 3, v6
v_sub_u32 v9, v5, v9
v_mul_u32_u24 v6, 3072, v6
v_lshl_add_u32 v6, v9, 10, v6
v_add3_u32 v6, v6, v7, s27
v_subrev_u32 v{VOW+b}, {1024*b}, v6""")
    k("""s_lshl_b32 s25, s22, 12
s_mul_i32 s26, s22, 3072
s_add_u32 s26, s26, 16384
s_waitcnt lgkmcnt(0)""")
    k.srd(8,4,2*MB); k.srd(12,6,512*3072)
    def dma_ops(i):
        sl=i%NS; ops=[]
        for a in range(4):
            pre=f"s_add_u32 m0, s25, {sl*CH}\ns_mov_b32 s27, {i*128}\n" if a==0 else ""
            ops.append((pre+f"buffer_load_dwordx4 v{VOX+a}, s[8:11], s27 offen offset:{1024*a} lds",f"c{i}"))
        for b in range(3):
            pre=f"s_add_u32 m0, s26, {sl*CH}\ns_mov_b32 s28, {i*196608}\n" if b==0 else ""
            ops.append((pre+f"buffer_load_dwordx4 v{VOW+b}, s[12:15], s28 offen offset:{1024*b} lds",f"c{i}"))
        return ops
    for i in range(2):
        for t,tag in dma_ops(i): k.vmem(t,tag)
    k.srd(16,20,WS_SIZE)
    k("""v_and_b32 v5, 31, v1
v_lshrrev_b32 v6, 5, v1
v_bfe_u32 v7, v5, 1, 3
v_lshlrev_b32 v8, 7, v5
v_add_u32 v8, s25, v8""")
    for t in range(4):
        k(f"""v_add_u32 v9, {2*t}, v6
v_xor_b32 v9, v9, v7
v_lshl_add_u32 v{XRD+t}, v9, 4, v8""")
    k(f"""v_bfe_u32 v7, v1, 2, 2
v_lshl_add_u32 v7, v6, 3, v7
v_mul_u32_u24 v7, 192, v7
v_bfe_u32 v8, v1, 4, 1
v_lshl_add_u32 v7, v8, 5, v7
v_and_b32 v8, 1, v1
v_lshl_add_u32 v7, v8, 4, v7
v_bfe_u32 v8, v1, 1, 1
v_lshl_add_u32 v{WRD}, v8, 3, v7""")
    for r in range(4): k(f"v_mov_b32 v{ONES+r}, 0x3f803f80")
    for u in range(3):
        for r in range(16): k(f"v_mov_b32 v{CSA(u)+r}, 0")
    k(f"""v_mov_b32 v8, 0
v_lshlrev_b32 v9, 2, v0
v_add_u32 v9, {LCS}, v9
v_cmp_gt_u32 vcc, 96, v0
s_and_saveexec_b64 s[28:29], vcc
ds_write_b32 v9, v8
s_mov_b64 exec, s[28:29]""")
    base=[0]
    def set_base(i):
        want=(i%NS)//2*2*CH
        if want!=base[0]:
            d=want-base[0]
            for r in [XRD,XRD+1,XRD+2,XRD+3,WRD]:
                k(f"v_add_u32 v{r}, {hex(d & 0xffffffff)}, v{r}")
            base[0]=want
    def reads(s):
        i,t=divmod(s,4); p=s%3; off=(i%NS)*CH-base[0]
        r=[f"ds_read_b128 v[{XF(p)}:{XF(p)+3}], v{XRD+t} offset:{off}"]
        for u in range(3):
            for e in range(2):
                r.append(f"ds_read_b64_tr_b16 v[{WF(p,u)+2*e}:{WF(p,u)+2*e+1}], v{WRD} offset:{off+16384+(16*t+4*e)*192+u*64}")
        return r
    k.wait_vm('c0'); k("s_waitcnt lgkmcnt(0)"); bar()
    k.stamp(1,60)
    for r in reads(0): k.ds(r,'s0')
    for r in reads(1): k.ds(r,'s1')
    sched={0:[2,3],1:[4],2:[5],3:[6],4:[7]}
    pend=[]
    for s in range(32):
        i,t=divmod(s,4); p=s%3
        if t==0:
            for c in sched.get(i,[]): pend+=dma_ops(c)
        k.wait_lg(f"s{s}")
        if t==2 and i<7:
            k.wait_vm(f"c{i+1}"); bar(); set_base(i+1)
        nxt=reads(s+2) if s+2<32 else []
        ndma=(len(pend)+(3-t))//(4-t) if pend else 0
        x=f"v[{XF(p)}:{XF(p)+3}]"
        def mf(u):
            acc=[accQ,accK,accV][u]
            c="0" if s==0 else f"v[{acc}:{acc+15}]"
            w=f"v[{WF(p,u)}:{WF(p,u)+3}]"
            if u<2: k(f"v_mfma_f32_32x32x16_bf16 v[{acc}:{acc+15}], {w}, {x}, {c}")
            else:   k(f"v_mfma_f32_32x32x16_bf16 v[{acc}:{acc+15}], {x}, {w}, {c}")
        def dma1():
            nonlocal ndma
            if ndma>0 and pend:
                tx,tag=pend.pop(0); k.vmem(tx,tag); ndma-=1
        mf(0)
        for r in nxt[:3]: k.ds(r,f"s{s+2}")
        mf(1)
        for r in nxt[3:5]: k.ds(r,f"s{s+2}")
        dma1()
        mf(2)
        for r in nxt[5:]: k.ds(r,f"s{s+2}")
        dma1()
        dma1(); dma1()
        k(f"s_cmp_lg_u32 s22, {t}")
        k(f"s_cbranch_scc1 {k.L(f'cs{s}')}")
        for u in range(3):
            k(f"v_mfma_f32_32x32x16_bf16 v[{CSA(u)}:{CSA(u)+15}], v[{ONES}:{ONES+3}], v[{WF(p,u)}:{WF(p,u)+3}], v[{CSA(u)}:{CSA(u)+15}]")
        k.label(f'cs{s}')
        if s in (6,14,18,26) and prof: k.stamp({6:4,14:5,18:6,26:7}[s],60)
    assert not pend
    k.stamp(2,60)
    k(f"""v_lshlrev_b32 v8, 2, v1
v_add_u32 v8, {LCS}, v8
s_mov_b32 exec_hi, 0""")
    for u in range(3):
        k(f"ds_add_f32 v8, v{CSA(u)} offset:{u*128}")
    k(f"""s_mov_b64 exec, -1
s_lshl_b32 s27, s22, 8
s_add_u32 s27, s27, {LRS}
s_waitcnt lgkmcnt(0)""")
    bar()
    k(f"""v_lshlrev_b32 v8, 4, v6
v_add_u32 v11, s27, v8
v_add_u32 v8, {LCS}, v8
v_and_b32 v9, 31, v1
v_lshlrev_b32 v9, 2, v9
v_add_u32 v9, {LCS}, v9""")
    k("v_and_b32 v5, 31, v1\nv_lshl_add_u32 v5, v5, 2, s27\nds_read_b32 v98, v5\nds_read_b32 v96, v5 offset:128")
    for q in range(4): k(f"ds_read_b128 v[{100+4*q}:{103+4*q}], v8 offset:{q*32}")
    for q in range(4): k(f"ds_read_b128 v[{116+4*q}:{119+4*q}], v8 offset:{128+q*32}")
    k("ds_read_b32 v99, v9 offset:256")
    for q in range(4): k(f"ds_read_b128 v[{64+4*q}:{67+4*q}], v11 offset:{q*32}")
    k(f"""s_waitcnt lgkmcnt(0)
v_mul_f32 v10, {fhex(QSCALE)}, v96
v_mul_f32 v12, v10, v98
v_mul_f32 v13, v96, v98""")
    for q in range(4): k(f"ds_read_b128 v[{80+4*q}:{83+4*q}], v11 offset:{128+q*32}")
    k(f"""s_cmp_lg_u32 s23, 0
s_cbranch_scc1 {k.L('nocs')}
v_cmp_gt_u32 vcc, 96, v0
s_and_saveexec_b64 s[28:29], vcc
s_cbranch_execz {k.L('nocs2')}
v_lshlrev_b32 v14, 2, v0
v_add_u32 v15, {LCS}, v14
ds_read_b32 v15, v15
v_lshrrev_b32 v14, 5, v0
v_lshlrev_b32 v14, 11, v14
v_and_b32 v3, 31, v0
v_lshl_add_u32 v14, v3, 2, v14
s_lshl_b32 s46, s24, 7
s_add_u32 s46, s46, {hex(WS_CS)}
s_waitcnt lgkmcnt(0)
buffer_store_dword v15, v14, s[16:19], s46 offen""")
    k.label('nocs2')
    k("s_mov_b64 exec, s[28:29]")
    k.label('nocs')
    for r in range(16):
        k(f"v_mul_f32 v{accQ+r}, v10, v{accQ+r}")
        k(f"v_fma_f32 v{accQ+r}, -v12, v{100+r}, v{accQ+r}")
    for j in range(8): k(f"v_cvt_pk_bf16_f32 v{100+j}, v{accQ+2*j}, v{accQ+2*j+1}")
    k(f"""s_lshl_b32 s27, s23, 2
s_add_u32 s27, s27, s22
s_lshl_b32 s28, s24, 7
s_add_u32 s28, s28, s27
s_lshl_b32 s28, s28, 10
v_lshlrev_b32 v8, 4, v1
s_add_u32 s46, s28, {hex(WS_Q[0])}
s_add_u32 s47, s28, {hex(WS_Q[0]+65536)}
s_add_u32 s48, s28, {hex(WS_K[0])}
s_add_u32 s49, s28, {hex(WS_K[0]+65536)}
s_add_u32 s50, s28, {hex(WS_V[0])}
buffer_store_dwordx4 v[100:103], v8, s[16:19], s46 offen
buffer_store_dwordx4 v[104:107], v8, s[16:19], s47 offen""")
    for r in range(16):
        k(f"v_mul_f32 v{accK+r}, v96, v{accK+r}")
        k(f"v_fma_f32 v{accK+r}, -v13, v{116+r}, v{accK+r}")
    for j in range(8): k(f"v_cvt_pk_bf16_f32 v{108+j}, v{accK+2*j}, v{accK+2*j+1}")
    k("""buffer_store_dwordx4 v[108:111], v8, s[16:19], s48 offen
buffer_store_dwordx4 v[112:115], v8, s[16:19], s49 offen
s_waitcnt lgkmcnt(0)""")
    for r in range(16):
        k(f"v_fma_f32 v{accV+r}, -v{64+r}, v99, v{accV+r}")
        k(f"v_mul_f32 v{accV+r}, v{80+r}, v{accV+r}")
    for j in range(8): k(f"v_cvt_pk_bf16_f32 v{116+j}, v{accV+2*j}, v{accV+2*j+1}")
    k("""v_bfe_u32 v9, v1, 4, 1
v_lshlrev_b32 v9, 16, v9
v_lshl_add_u32 v9, v6, 8, v9
v_and_b32 v10, 15, v1
v_lshl_add_u32 v9, v10, 4, v9
buffer_store_dwordx4 v[116:119], v9, s[16:19], s50 offen
buffer_store_dwordx4 v[120:123], v9, s[16:19], s50 offen offset:512""")
    if prof:
        k("s_waitcnt vmcnt(0)"); k.stamp(3,60); k.stamp_flush(8,60,16,72,22)
    k.dbg_end()
    k("s_endpgm")
    k.label('helper')
    k.vm=[]; k.lg=[]
    k("s_sub_u32 s22, s22, 4\ns_waitcnt lgkmcnt(0)")
    k.srd(8,4,2*MB); k.srd(12,6,512*3072); k.srd(16,20,WS_SIZE)
    k("""v_and_b32 v5, 31, v1
v_lshrrev_b32 v6, 5, v1
s_lshl_b32 s46, s23, 7
s_lshl_b32 s47, s22, 5
s_add_u32 s46, s46, s47
v_add_u32 v7, s46, v5
v_lshlrev_b32 v7, 10, v7
v_lshl_add_u32 v7, v6, 4, v7
s_lshl_b32 s47, s24, 6
buffer_load_dwordx4 v[12:15], v7, s[8:11], s47 offen
buffer_load_dwordx4 v[16:19], v7, s[8:11], s47 offen offset:32""")
    k("""s_lshl_b32 s29, s28, 2
s_add_u32 s29, s29, s22
v_mul_u32_u24 v2, 43, v1
v_lshrrev_b32 v2, 8, v2
v_mul_u32_u24 v3, 6, v2
v_sub_u32 v3, v1, v3
s_mul_i32 s30, s29, 6
v_add_u32 v3, s30, v3
v_mul_u32_u24 v4, 43691, v3
v_lshrrev_b32 v4, 19, v4
v_mul_u32_u24 v5, 12, v4
v_sub_u32 v5, v3, v5
v_lshrrev_b32 v7, 2, v5
v_and_b32 v5, 3, v5
v_mul_u32_u24 v4, 3072, v4
v_lshl_add_u32 v4, v7, 10, v4
v_lshl_add_u32 v4, v5, 7, v4
s_and_b32 s30, s27, 1
s_lshl_b32 s30, s30, 9
v_add_u32 v4, s30, v4
s_mov_b32 s30, 196608
v_mul_lo_u32 v2, v2, s30
v_add_u32 v4, v4, v2
v_and_b32 v5, 3, v1
v_lshrrev_b32 v7, 2, v1
s_lshr_b32 s30, s27, 1
s_lshl_b32 s30, s30, 9
s_lshl_b32 s31, s29, 2
s_add_u32 s30, s30, s31
v_add_u32 v5, s30, v5
v_lshlrev_b32 v5, 10, v5
v_lshl_add_u32 v5, v7, 7, v5
s_mov_b32 exec_lo, -1
s_mov_b32 exec_hi, 0xffff
buffer_load_dword v48, v4, s[12:15], 0 offen
s_mov_b32 exec_hi, 0
buffer_load_dword v49, v5, s[8:11], 0 offen
s_mov_b64 exec, -1""")
    k(f"""s_getpc_b64 s[44:45]
{k.name}_pc:
s_and_b32 s45, s45, 0xffff
s_mov_b32 s46, (all_code_end-{k.name}_pc)
s_mov_b32 s47, 0x20000
s_lshl_b32 s48, s29, 9
v_lshlrev_b32 v6, 7, v1
s_mov_b32 exec_lo, 0xf
s_mov_b32 exec_hi, 0
buffer_load_dword v50, v6, s[44:47], s48 offen
s_mov_b64 exec, -1""")
    HX=20
    k("""v_and_b32 v5, 31, v1
v_lshrrev_b32 v6, 5, v1
s_lshl_b32 s25, s22, 12
v_bfe_u32 v7, v5, 1, 3
v_lshlrev_b32 v11, 7, v5
v_add_u32 v11, s25, v11""")
    for t in range(4):
        k(f"v_add_u32 v2, {2*t}, v6\nv_xor_b32 v2, v2, v7\nv_lshl_add_u32 v{HX+t}, v2, 4, v11")
    for r in range(24,28): k(f"v_mov_b32 v{r}, 0")
    hbase=[0]
    def hread(s):
        i,t=divmod(s,4); want=(i%NS)//2*2*CH
        if want!=hbase[0]:
            for r in range(4): k(f"v_add_u32 v{HX+r}, {hex((want-hbase[0])&0xffffffff)}, v{HX+r}")
            hbase[0]=want
        p=s%3
        k.ds(f"ds_read_b128 v[{32+4*p}:{35+4*p}], v{HX+t} offset:{(i%NS)*CH-hbase[0]}",f"h{s}")
    k("s_barrier")
    hread(0); hread(1)
    for s in range(32):
        i,t=divmod(s,4); p=s%3
        k.wait_lg(f"h{s}")
        if t==2 and i<7: k("s_barrier")
        if s+2<32: hread(s+2)
        if s==4:
            k(f"""s_lshl_b32 s30, s23, 2
s_add_u32 s30, s30, s22
s_lshl_b32 s30, s30, 5
s_lshl_b32 s31, s24, 1
s_add_u32 s30, s30, s31
s_lshl_b32 s30, s30, 10
s_add_u32 s30, s30, {hex(WS_X0F)}
v_lshlrev_b32 v8, 4, v1
s_waitcnt vmcnt(3)
buffer_store_dwordx4 v[12:15], v8, s[16:19], s30 offen
buffer_store_dwordx4 v[16:19], v8, s[16:19], s30 offen offset:1024
s_load_dwordx2 s[30:31], s[0:1], 16
s_load_dwordx4 s[32:35], s[0:1], 40
s_load_dwordx2 s[36:37], s[0:1], 56""")
        if s==20:
            k("s_waitcnt lgkmcnt(0)"); k.lg=[]
            k.srd(40,30,512*1024); k.srd(44,32,512*3584); k.srd(48,34,512*3584); k.srd(52,36,1792*1024)
            k("""s_and_b32 s39, s2, 7
s_lshl_b32 s30, s29, 12
v_lshl_add_u32 v2, v1, 7, s30
v_mul_u32_u24 v3, 205, v1
v_lshrrev_b32 v3, 10, v3
v_mul_u32_u24 v4, 5, v3
v_sub_u32 v4, v1, v4
s_lshl_b32 s30, s29, 2
v_add_u32 v3, s30, v3
s_movk_i32 s30, 3584
v_mul_lo_u32 v3, v3, s30
s_mul_i32 s30, s39, 448
s_and_b32 s30, s30, 0xffffff80
v_lshl_add_u32 v3, v4, 7, v3
v_add_u32 v3, s30, v3
s_mul_i32 s30, s39, 229376
s_mul_i32 s31, s29, 1792
s_add_u32 s30, s30, s31
v_lshlrev_b32 v4, 7, v1
s_mov_b32 exec_lo, -1
s_mov_b32 exec_hi, 0
buffer_load_dword v44, v2, s[40:43], 0 offen
s_mov_b32 exec_lo, 0xfffff
buffer_load_dword v45, v3, s[44:47], 0 offen
buffer_load_dword v46, v3, s[48:51], 0 offen
s_mov_b32 exec_lo, 0x3fff
buffer_load_dword v47, v4, s[52:55], s30 offen
s_mov_b64 exec, -1""")
        for j in range(4):
            r=32+4*p+j
            k(f"""v_lshlrev_b32 v28, 16, v{r}
v_and_b32 v29, 0xffff0000, v{r}
v_add_f32 v24, v24, v28
v_add_f32 v25, v25, v29
v_fmac_f32 v26, v28, v28
v_fmac_f32 v27, v29, v29""")
    k(f"""v_add_f32 v24, v24, v25
v_add_f32 v26, v26, v27
v_mov_b32 v25, v24
v_mov_b32 v27, v26
v_permlane32_swap_b32 v24, v25
v_permlane32_swap_b32 v26, v27
v_add_f32 v24, v24, v25
v_add_f32 v26, v26, v27
v_mul_f32 v24, {fhex(1/512)}, v24
v_mul_f32 v26, {fhex(1/512)}, v26
v_fma_f32 v26, -v24, v24, v26
v_add_f32 v26, {fhex(EPS)}, v26
v_rsq_f32 v26, v26
s_lshl_b32 s27, s22, 8
s_add_u32 s27, s27, {LRS}
v_lshl_add_u32 v2, v5, 2, s27
ds_write_b32 v2, v24
ds_write_b32 v2, v26 offset:128
s_waitcnt lgkmcnt(0)
s_barrier""")
    k(f"""v_lshlrev_b32 v8, 4, v1
s_cmp_lg_u32 s22, 0
s_cbranch_scc1 {k.L('end')}
v_mov_b32 v24, 0
v_mov_b32 v25, 0
v_mov_b32 v26, 0
v_mov_b32 v27, 0
s_mul_i32 s27, s2, 320
s_add_u32 s27, s27, {hex(WS_ST[0])}
s_mov_b32 exec_lo, 0xfffff
s_mov_b32 exec_hi, 0
buffer_store_dwordx4 v[24:27], v8, s[16:19], s27 offen""")
    assert nbar[0]==9, nbar
    k.label('end')
    k("s_endpgm")
    return k, k.kd(176,96,176), ((256,1,1),(512,1,1),LDS)
```

```python
from asmfw import *
import struct
def f2u(x): return struct.unpack('<I', struct.pack('<f', x))[0]
def fhex(x): return hex(f2u(x))

MB=1<<20
WS_Q=[0*MB, 8*MB]; WS_K=[2*MB,10*MB]; WS_V=[4*MB,12*MB]; WS_O=[6*MB,14*MB]
WS_X0F=16*MB; WS_X1F=18*MB; WS_X3F=20*MB
SMALL=22*MB
WS_ST=[SMALL+0, SMALL+0x6000]
WS_QSEL=SMALL+0x14000
WS_HSEL=SMALL+0x15800
WS_EWF=SMALL+0x17400
WS_CS=SMALL+0x18000
WS_SEL=[SMALL+0x1A000, SMALL+0x1A100]
WS_SW=SMALL+0x1A200
WS_XB=[SMALL+0x1C000, SMALL+0x1D000]
WS_X2S=SMALL+0x1B000
WS_YACC=[SMALL+0xC000, SMALL+0x10000]
WS_WH=24*MB
WS_TS=SMALL+0x100000
WS_SIZE=0x10000000
ZERO_PER_WG=384
EPS=1e-5
QSCALE=0.25*1.4426950408889634

import os
DBGTS=bool(os.environ.get('DBGTS'))
DBGWG=int(os.environ.get('DBGWG','0'))
NLAUNCH=int(os.environ.get('NLAUNCH','8'))
STF=os.environ.get('STF',' sc1')
class KB:
    def __init__(self,name,prof=False,kidx=0):
        self.name=name; self.a=Asm(); self.vm=[]; self.lg=[]; self.prof=prof; self.kidx=kidx; self.nst=0; self.npc=0
    def __call__(self,t): self.a(t)
    def label(self,n): self.a.label(self.name+'_'+n)
    def L(self,n): return self.name+'_'+n
    def vmem(self,t,tag):
        self.a(t); self.vm.append(tag); assert len(self.vm)<=63, "too many vmem in flight"
    def wait_vm(self,tag):
        idx=max(i for i,t in enumerate(self.vm) if t==tag)
        n=len(self.vm)-1-idx
        self.a(f"s_waitcnt vmcnt({n})"); self.vm=self.vm[idx+1:]
    def wait_vm_all(self):
        self.a("s_waitcnt vmcnt(0)"); self.vm=[]
    def ds(self,t,tag='x'):
        self.a(t); self.lg.append(tag)
    def wait_lg(self,tag=None):
        if tag is None or tag not in self.lg:
            if tag is None:
                self.a("s_waitcnt lgkmcnt(0)"); self.lg=[]
            return
        idx=max(i for i,t in enumerate(self.lg) if t==tag)
        n=len(self.lg)-1-idx
        assert n<=15
        self.a(f"s_waitcnt lgkmcnt({n})"); self.lg=self.lg[idx+1:]
    def srd(self,s,ptr,size):
        self.a(f"""s_mov_b32 s{s}, s{ptr}
s_and_b32 s{s+1}, s{ptr+1}, 0xffff
s_mov_b32 s{s+2}, {hex(size)}
s_mov_b32 s{s+3}, 0x20000""")
    def dbg_begin(self):
        if not DBGTS: return
        self.a("s_memrealtime s[96:97]")
    def dbg_end(self):
        if not DBGTS: return
        last = (self.kidx==NLAUNCH-1)
        self.a(f"""s_cmp_lg_u32 s2, {DBGWG if not last else 0}
s_cbranch_scc1 {self.L('dbgskip')}
s_memrealtime s[98:99]
s_load_dwordx2 s[94:95], s[0:1], 80
s_waitcnt lgkmcnt(0)
s_add_u32 s94, s94, {hex(WS_TS+0x80000)}
s_addc_u32 s95, s95, 0
v_mov_b32 v2, s96
v_mov_b32 v3, s98
v_mov_b32 v4, {8*self.kidx}
v_cmp_eq_u32 vcc, 0, v0
s_and_saveexec_b64 s[92:93], vcc
s_cbranch_execz {self.L('dbgskip')}
global_store_dwordx2 v4, v[2:3], s[94:95] sc1""")
        if last:
            self.a("""s_waitcnt vmcnt(0)
s_mov_b64 exec, 0xffff
v_lshlrev_b32 v4, 2, v0
global_load_dword v2, v4, s[94:95] sc1
s_load_dwordx2 s[94:95], s[0:1], 72
s_waitcnt vmcnt(0) lgkmcnt(0)""")
            for i in range(NLAUNCH):
                self.a(f"global_store_dword v4, v2, s[94:95]\ns_sub_u32 s94, s94, 512\ns_subb_u32 s95, s95, 0")
        self.label('dbgskip')
    def touch_lin(self,srd,vtmp,vdst,lane,sslot,nlines,sbase,stmp,tag=None):
        n=nlines; off=0
        self.a(f"s_mul_i32 s{stmp}, s{sslot}, {nlines*128}\ns_add_u32 s{stmp}, s{stmp}, {sbase}\nv_lshlrev_b32 v{vtmp}, 7, v{lane}")
        while n>0:
            m=min(n,64)
            if m<64: self.a(f"s_mov_b32 exec_lo, {hex((1<<min(m,32))-1)}\ns_mov_b32 exec_hi, {hex((1<<max(m-32,0))-1)}")
            t=f"buffer_load_dword v{vdst}, v{vtmp}, s[{srd}:{srd+3}], s{stmp} offen"
            if tag: self.vmem(t,tag)
            else: self.a(t)
            if m<64: self.a("s_mov_b64 exec, -1")
            n-=m; off+=m
            if n>0: self.a(f"s_add_u32 s{stmp}, s{stmp}, {64*128}")
    def code_touch(self,sbase,vtmp,vdst,sslot,lines,tag=None):
        lab=f"{self.name}_pc{self.npc}"; self.npc+=1
        self.a(f"""s_getpc_b64 s[{sbase}:{sbase+1}]
{lab}:
s_add_u32 s{sbase}, s{sbase}, ({self.name}_codeend-{lab})
s_addc_u32 s{sbase+1}, s{sbase+1}, 0
s_and_b32 s{sbase+1}, s{sbase+1}, 0xffff
s_mov_b32 s{sbase+2}, (all_code_end-{self.name}_codeend)
s_mov_b32 s{sbase+3}, 0x20000
s_mul_i32 s{sslot}, s{sslot}, {lines*128}
v_lshlrev_b32 v{vtmp}, 7, v1
s_mov_b32 exec_lo, {hex((1<<lines)-1)}
s_mov_b32 exec_hi, 0""")
        t=f"buffer_load_dword v{vdst}, v{vtmp}, s[{sbase}:{sbase+3}], s{sslot} offen"
        if tag: self.vmem(t,tag)
        else: self.a(t)
        self.a("s_mov_b64 exec, -1")
    def header(self):
        return f".globl {self.name}\n.p2align 8\n.type {self.name},@function\n{self.name}:\n"
    def kd(self,vgpr,sgpr,accum):
        return f""".amdhsa_kernel {self.name}
  .amdhsa_next_free_vgpr {vgpr}
  .amdhsa_next_free_sgpr {100 if DBGTS else sgpr}
  .amdhsa_accum_offset {accum}
  .amdhsa_group_segment_fixed_size 0
  .amdhsa_kernarg_size 88
  .amdhsa_user_sgpr_count 2
  .amdhsa_user_sgpr_kernarg_segment_ptr 1
  .amdhsa_system_sgpr_workgroup_id_x 1
  .amdhsa_float_denorm_mode_32 3
.end_amdhsa_kernel
"""
    def stamp(self,slot,sreg):
        if not self.prof: return
        self.a(f"s_memrealtime s[{sreg+2*slot}:{sreg+2*slot+1}]")
    def stamp_flush(self,nslots,sreg,wsrd,vtmp,swave,swg='s2'):
        if not self.prof: return
        self.a(f"""s_waitcnt lgkmcnt(0)
s_cmp_lg_u32 s{swave}, 0
s_cbranch_scc1 {self.L('nostamp%d'%self.nst)}
s_lshl_b32 s{sreg+2*nslots}, {swg}, 6
s_add_u32 s{sreg+2*nslots}, s{sreg+2*nslots}, {hex(WS_TS+self.kidx*512*64)}
v_mov_b32 v{vtmp+2}, 0""")
        for i in range(nslots):
            self.a(f"""v_mov_b32 v{vtmp}, s{sreg+2*i}
v_mov_b32 v{vtmp+1}, s{sreg+2*i+1}
buffer_store_dwordx2 v[{vtmp}:{vtmp+1}], v{vtmp+2}, s[{wsrd}:{wsrd+3}], s{sreg+2*nslots} offen offset:{8*i}
s_nop 1""")
        self.label('nostamp%d'%self.nst); self.nst+=1
    def text(self):
        t=self.a.finish()
        out=[]
        for ln in t.split('\n'):
            st=ln.strip()
            if st.startswith('buffer_store') and 'sc1' not in st and 'dwordx2' not in st: ln=ln+STF
            out.append(ln)
        return self.header()+'\n'.join(out)+f"{self.name}_codeend:\n"
```

```python
from common import *
import os

LZ=0; LKEY=4096; LH=4160; LG=4352; LU=LG+32768+32; LD=LU+32768+32; DSTR=1088
LDS_FFN=LD+32*DSTR
def wave_red(k,reg,op,tmp):
    for m in ('quad_perm:[1,0,3,2]','quad_perm:[2,3,0,1]','row_half_mirror','row_mirror'):
        k(f"{op}_dpp v{reg}, v{reg}, v{reg} {m} row_mask:0xf bank_mask:0xf")
    k(f"v_mov_b32 v{tmp}, v{reg}\nv_permlane16_swap_b32 v{reg}, v{tmp}\n{op} v{reg}, v{reg}, v{tmp}")
    k(f"v_mov_b32 v{tmp}, v{reg}\nv_permlane32_swap_b32 v{reg}, v{tmp}\n{op} v{reg}, v{reg}, v{tmp}")

def emit_ffn(k,layer,xsrc,sf=24,sw=22):
    k(f"v_lshlrev_b32 v3, 4, v1\ns_cmp_ge_u32 s{sw}, 4\ns_cbranch_scc1 {k.L('ffn_dma')}")
    k(f"""s_lshl_b32 s30, s{sw}, 11
v_add_u32 v2, s30, v3
s_mov_b32 s30, {hex(WS_ST[layer])}
s_add_u32 s31, s30, 8192
s_add_u32 s40, s30, 16384
s_add_u32 s46, s20, {hex(WS_SW)}
s_addc_u32 s47, s21, 0
s_load_dword s44, s[46:47], 0""")
    for a,sr_ in enumerate((30,31,40)):
        for q in range(2):
            k(f"buffer_load_dwordx4 v[{16+8*a+4*q}:{19+8*a+4*q}], v2, s[16:19], s{sr_} offen offset:{1024*q}")
    k("s_barrier")
    k(f"""v_lshrrev_b32 v40, 2, v2
v_mov_b32 v41, 0xfffff800
v_mov_b32 v42, {fhex(512.0)}
v_mov_b32 v43, {fhex(EPS*512*512)}
s_waitcnt vmcnt(0) lgkmcnt(0)
v_mov_b32 v44, {fhex(-1/512)}
v_mul_f32 v44, s44, v44""")
    k.stamp(1,50)
    for j in range(8): k(f"v_fma_f32 v{24+j}, v{24+j}, v42, v43")
    for j in range(8): k(f"v_fma_f32 v{32+j}, v{16+j}, v44, v{32+j}")
    for j in range(8): k(f"v_fma_f32 v{24+j}, -v{16+j}, v{16+j}, v{24+j}")
    for j in range(8): k(f"v_rsq_f32 v{24+j}, v{24+j}")
    for j in range(8): k(f"v_add_u32 v{16+j}, {256*(j>>2)+(j&3)}, v40")
    for j in range(8): k(f"v_mul_f32 v{32+j}, v{32+j}, v{24+j}")
    for j in range(8): k(f"v_and_or_b32 v{32+j}, v{32+j}, v41, v{16+j}")
    k("""v_max3_f32 v45, v32, v33, v34
v_max3_f32 v46, v35, v36, v37
v_max3_f32 v45, v45, v38, v39
v_max_f32 v45, v45, v46""")
    wave_red(k,45,'v_max_f32',46)
    k(f"""s_lshl_b32 s41, s{sw}, 2
v_mov_b32 v46, s41
ds_write_b32 v46, v45 offset:{LKEY}
s_waitcnt lgkmcnt(0)
s_barrier
v_mov_b32 v46, 0
ds_read_b128 v[48:51], v46 offset:{LKEY}
s_waitcnt lgkmcnt(0)
v_max3_f32 v48, v48, v49, v50
v_max_f32 v48, v48, v51
v_and_b32 v48, 0x7ff, v48
s_nop 0
v_readfirstlane_b32 s45, v48""")
    k.stamp(4,50)
    k(f"""s_lshr_b32 s41, s45, 5
s_lshl_b32 s41, s41, 15
s_and_b32 s42, s45, 31
s_lshl_b32 s42, s42, 4
s_add_u32 s41, s41, s42
s_add_u32 s41, s41, {hex(xsrc)}
v_lshlrev_b32 v5, 9, v1
buffer_load_dwordx4 v[8:11], v5, s[16:19], s41 offen
s_lshl_b32 s42, s45, 2
s_add_u32 s42, s42, {hex(WS_ST[layer])}
s_add_u32 s46, s20, s42
s_addc_u32 s47, s21, 0
s_load_dword s40, s[46:47], 0
s_load_dword s41, s[46:47], 8192
s_load_dword s42, s[46:47], 16384
s_barrier""")
    k(f"""v_lshrrev_b32 v4, 4, v1
v_bfe_u32 v5, v1, 2, 2
v_lshl_add_u32 v6, v4, 3, v5
v_lshlrev_b32 v7, 6, v6
v_and_b32 v12, 1, v1
v_lshl_add_u32 v7, v12, 3, v7
s_lshl_b32 s43, s{sw}, 4
v_add_u32 v7, s43, v7
v_bfe_u32 v12, v1, 1, 1
v_mul_u32_u24 v12, {LU-LG}, v12
v_add_u32 v7, v7, v12
v_add_u32 v7, {LG}, v7
v_mul_u32_u24 v6, {DSTR}, v6
v_and_b32 v12, 3, v1
v_lshl_add_u32 v6, v12, 3, v6
s_lshl_b32 s43, s{sw}, 8
v_add_u32 v6, s43, v6
v_add_u32 v6, {LD}, v6""")
    for s in range(16):
        k(f"ds_read_b64_tr_b16 v[{64+4*s}:{65+4*s}], v7 offset:{s*2048}\nds_read_b64_tr_b16 v[{66+4*s}:{67+4*s}], v7 offset:{s*2048+256}")
    for cg in range(8):
        k(f"ds_read_b64_tr_b16 v[{128+4*cg}:{129+4*cg}], v6 offset:{cg*32}\nds_read_b64_tr_b16 v[{130+4*cg}:{131+4*cg}], v6 offset:{cg*32+4*DSTR}")
    k.stamp(5,50)
    k(f"""s_waitcnt lgkmcnt(0)
v_mov_b32 v16, s40
v_mov_b32 v17, s41
v_mul_f32 v16, {fhex(1/512)}, v16
v_mul_f32 v17, {fhex(1/512)}, v17
v_fma_f32 v17, -v16, v16, v17
v_add_f32 v17, {fhex(EPS)}, v17
v_rsq_f32 v17, v17
s_waitcnt vmcnt(0)""")
    k.stamp(6,50)
    k(f"""s_or_b32 s43, s{sf}, s{sw}
s_cmp_lg_u32 s43, 0
s_cbranch_scc1 {k.L('ffn_noxb')}
v_add_f32 v18, 1.0, v17
v_mul_f32 v19, v16, v17""")
    for j in range(4):
        k(f"""v_lshlrev_b32 v{28+2*j}, 16, v{8+j}
v_and_b32 v{29+2*j}, 0xffff0000, v{8+j}
v_fma_f32 v{28+2*j}, v{28+2*j}, v18, -v19
v_fma_f32 v{29+2*j}, v{29+2*j}, v18, -v19""")
    k(f"""v_lshlrev_b32 v5, 5, v1
s_mov_b32 s43, {hex(WS_XB[layer])}
buffer_store_dwordx4 v[28:31], v5, s[16:19], s43 offen
buffer_store_dwordx4 v[32:35], v5, s[16:19], s43 offen offset:16""")
    k.label('ffn_noxb')
    for j in range(4):
        k(f"""v_lshlrev_b32 v18, 16, v{8+j}
v_and_b32 v19, 0xffff0000, v{8+j}
v_sub_f32 v18, v18, v16
v_sub_f32 v19, v19, v16
v_mul_f32 v18, v18, v17
v_mul_f32 v19, v19, v17
v_cvt_pk_bf16_f32 v{8+j}, v18, v19""")
    k(f"""s_lshl_b32 s43, s{sw}, 10
v_add_u32 v5, s43, v3
ds_write_b128 v5, v[8:11] offset:{LZ}
v_lshl_add_u32 v5, v4, 4, s43
s_waitcnt lgkmcnt(0)""")
    for s in range(16):
        k(f"ds_read_b128 v[{160+4*(s%8)}:{163+4*(s%8)}], v5 offset:{LZ+64*s}")
        if s==7:
            k("s_waitcnt lgkmcnt(0)")
            for t in range(8):
                acc=20+4*(t&1); c="0" if t<2 else f"v[{acc}:{acc+3}]"
                k(f"v_mfma_f32_16x16x32_bf16 v[{acc}:{acc+3}], v[{64+4*t}:{67+4*t}], v[{160+4*t}:{163+4*t}], {c}")
    k("s_waitcnt lgkmcnt(0)")
    for t in range(8,16):
        acc=20+4*(t&1)
        k(f"v_mfma_f32_16x16x32_bf16 v[{acc}:{acc+3}], v[{64+4*t}:{67+4*t}], v[{160+4*(t-8)}:{163+4*(t-8)}], v[{acc}:{acc+3}]")
    k(f"""s_cmp_lg_u32 s{sf}, 0
s_cbranch_scc1 {k.L('ffn_nosel')}
s_cmp_lg_u32 s{sw}, 0
s_cbranch_scc1 {k.L('ffn_nosel')}
v_mov_b32 v29, s42
v_mul_f32 v28, s44, v16
v_sub_f32 v29, v29, v28
v_mul_f32 v29, v29, v17
v_mul_f32 v29, {fhex(-1.4426950408889634)}, v29
v_exp_f32 v29, v29
v_add_f32 v29, 1.0, v29
v_rcp_f32 v37, v29
v_mov_b32 v36, s45
v_mov_b32 v38, v16
v_mov_b32 v39, v17
v_mov_b32 v29, 0
s_mov_b32 s41, {hex(WS_SEL[layer])}
s_mov_b64 s[46:47], exec
s_mov_b64 exec, 1
buffer_store_dwordx4 v[36:39], v29, s[16:19], s41 offen
s_mov_b64 exec, s[46:47]""")
    k.label('ffn_nosel')
    for r in range(4): k(f"v_add_f32 v{20+r}, v{20+r}, v{24+r}")
    for r in range(4): k(f"v_mov_b32 v{24+r}, v{20+r}")
    for r in range(4): k(f"v_permlane32_swap_b32 v{20+r}, v{24+r}")
    for r in range(4): k(f"v_mul_f32 v{28+r}, {fhex(-1.4426950408889634)}, v{20+r}")
    for r in range(4): k(f"v_exp_f32 v{28+r}, v{28+r}")
    for r in range(4): k(f"v_add_f32 v{28+r}, 1.0, v{28+r}")
    for r in range(4): k(f"v_rcp_f32 v{28+r}, v{28+r}")
    for r in range(4): k(f"v_mul_f32 v{20+r}, v{20+r}, v{24+r}")
    for r in range(4): k(f"v_mul_f32 v{20+r}, v{20+r}, v{28+r}")
    k(f"""v_cvt_pk_bf16_f32 v20, v20, v21
v_cvt_pk_bf16_f32 v21, v22, v23
s_lshl_b32 s43, s{sw}, 4
v_lshl_add_u32 v5, v4, 3, s43
s_mov_b64 s[46:47], exec
s_mov_b64 exec, 0x10001
ds_write_b64 v5, v[20:21] offset:{LH}
s_mov_b64 exec, s[46:47]
s_waitcnt lgkmcnt(0)
s_barrier
v_lshlrev_b32 v5, 4, v4
ds_read_b128 v[8:11], v5 offset:{LH}
s_waitcnt lgkmcnt(0)""")
    k.stamp(7,50)
    for cg in range(8):
        k(f"v_mfma_f32_16x16x32_bf16 v[{64+4*cg}:{67+4*cg}], v[8:11], v[{128+4*cg}:{131+4*cg}], 0")
    k(f"""v_cmp_eq_u32 s[40:41], 1, v4
v_cmp_eq_u32 s[42:43], 2, v4
v_cmp_eq_u32 s[46:47], 3, v4
s_and_b32 s44, s{sf}, 7
s_lshl_b32 s44, s44, 11
s_lshl_b32 s30, s{sw}, 9
s_add_u32 s44, s44, s30
s_add_u32 s44, s44, {hex(WS_YACC[layer])}
v_lshlrev_b32 v5, 2, v1""")
    for q in range(2):
        b=64+16*q
        k(f"""v_cndmask_b32 v{b}, v{b}, v{b+4}, s[40:41]
v_cndmask_b32 v{b}, v{b}, v{b+8}, s[42:43]
v_cndmask_b32 v{b}, v{b}, v{b+12}, s[46:47]
buffer_atomic_add_f32 v{b}, v5, s[16:19], s44 offen offset:{256*q}""")
    k(f"s_branch {k.L('ffn_end')}")
    k.label('ffn_dma')
    k(f"""s_load_dwordx4 s[4:7], s[0:1], 40
s_load_dwordx2 s[26:27], s[0:1], 56
s_sub_u32 s45, s{sw}, 4
v_lshrrev_b32 v4, 2, v1
s_lshl_b32 s41, s45, 7
v_add_u32 v4, s41, v4
s_movk_i32 s42, 3584
v_mul_lo_u32 v4, v4, s42
v_and_b32 v5, 3, v1
v_lshl_add_u32 v4, v5, 4, v4
s_lshl_b32 s41, s{sf}, 6
v_add_u32 v4, s41, v4
s_lshl_b32 s43, s45, 13
s_waitcnt lgkmcnt(0)""")
    k.srd(8,4,512*3584); k.srd(12,6,512*3584); k.srd(32,26,1792*1024)
    k("s_barrier")
    for a in range(8):
        for srd,lb in ((8,LG),(12,LU)):
            k(f"s_add_u32 m0, s43, {lb+a*1024}\ns_mov_b32 s44, {a*16*3584}\nbuffer_load_dwordx4 v4, s[{srd}:{srd+3}], s44 offen lds")
    k(f"""s_lshl_b32 s41, s{sf}, 5
s_lshl_b32 s42, s45, 3
s_add_u32 s41, s41, s42
s_lshl_b32 s41, s41, 10
s_mul_i32 s43, s42, {DSTR}
s_add_u32 s43, s43, {LD}""")
    for a in range(8):
        k(f"s_mov_b32 m0, s43\ns_add_u32 s43, s43, {DSTR}\nbuffer_load_dwordx4 v3, s[32:35], s41 offen lds\ns_add_u32 s41, s41, 1024")
    k("s_barrier\ns_waitcnt vmcnt(0)\ns_barrier\ns_endpgm")
    k.label('ffn_end')
```

```python
from common import *
from k_ffn import wave_red
import os

def gen_qkv1(prof=False,kidx=0):
    k=KB('qkv1_kernel',prof,kidx)
    NS=5; CH=28672
    LCS=NS*CH
    LRS=LCS+512
    LDS=LRS+1024
    accQ,accK,accV=16,32,48
    WF=lambda p,u: 64+12*p+4*u
    XF=lambda p: 100+4*p
    XRD=112; WRD=116; CSA=120; SEL=lambda u: 136+4*u
    k("s_cmp_ge_u32 s2, 256")
    k(f"s_cbranch_scc1 {k.L('end')}")
    k.stamp(0,60)
    k.dbg_begin()
    k("""s_load_dwordx4 s[4:7], s[0:1], 0
s_load_dwordx2 s[20:21], s[0:1], 80
v_lshrrev_b32 v2, 6, v0
v_and_b32 v1, 63, v0
v_readfirstlane_b32 s22, v2
s_and_b32 s27, s2, 7
s_lshr_b32 s28, s2, 3""")
    k("""s_lshr_b32 s23, s27, 1
s_lshl_b32 s23, s23, 2
s_and_b32 s29, s28, 3
s_add_u32 s23, s23, s29
s_and_b32 s24, s27, 1
s_lshl_b32 s24, s24, 3
s_lshr_b32 s29, s28, 2
s_add_u32 s24, s24, s29""")
    k(f"s_cmp_ge_u32 s22, 8\ns_cbranch_scc1 {k.L('loader')}")
    k("s_and_b32 s25, s22, 3")
    k("""v_and_b32 v5, 31, v1
v_lshrrev_b32 v6, 5, v1
v_bfe_u32 v7, v5, 1, 3
s_lshl_b32 s26, s25, 12
v_lshlrev_b32 v8, 7, v5
v_add_u32 v8, s26, v8""")
    k("s_cmp_lt_u32 s22, 4\ns_cselect_b32 s29, s22, 0")
    for t in range(4):
        k(f"""s_add_u32 s30, s29, {t}
s_and_b32 s30, s30, 3
s_lshl_b32 s31, s30, 1
v_add_u32 v9, s31, v6
v_xor_b32 v9, v9, v7
v_lshl_add_u32 v{XRD+t}, v9, 4, v8""")
    k(f"""v_bfe_u32 v7, v1, 2, 2
v_lshl_add_u32 v7, v6, 3, v7
v_mul_u32_u24 v7, 192, v7
v_bfe_u32 v8, v1, 4, 1
v_lshl_add_u32 v7, v8, 5, v7
v_and_b32 v8, 1, v1
v_lshl_add_u32 v7, v8, 4, v7
v_bfe_u32 v8, v1, 1, 1
v_lshl_add_u32 v7, v8, 3, v7""")
    for t in range(4):
        k(f"""s_add_u32 s30, s29, {t}
s_and_b32 s30, s30, 3
s_mul_i32 s30, s30, 3072
v_add_u32 v{WRD+t}, s30, v7""")
    def mkbase():
        base=[0]
        def set_base(i,regs):
            want=(i%NS)//2*2*CH
            if want!=base[0]:
                for r in regs: k(f"v_add_u32 v{r}, {hex((want-base[0]) & 0xffffffff)}, v{r}")
                base[0]=want
        return base,set_base
    k(f"s_cmp_ge_u32 s22, 4\ns_cbranch_scc1 {k.L('stats')}")
    base,set_base=mkbase()
    def reads(s):
        i,t=divmod(s,4); p=s%3; off=(i%NS)*CH-base[0]
        r=[f"ds_read_b128 v[{XF(p)}:{XF(p)+3}], v{XRD+t} offset:{off}"]
        for u in range(3):
            for e in range(2):
                r.append(f"ds_read_b64_tr_b16 v[{WF(p,u)+2*e}:{WF(p,u)+2*e+1}], v{WRD+t} offset:{off+16384+4*e*192+u*64}")
        return r
    k("v_and_b32 v9, 31, v1\nv_mov_b32 v10, 0x3f803f80")
    for u in range(3):
        k(f"v_cmp_eq_u32 s[30:31], {u}, v9\nv_cndmask_b32 v{SEL(u)}, 0, v10, s[30:31]")
        for r in range(1,4): k(f"v_mov_b32 v{SEL(u)+r}, v{SEL(u)}")
    k(f"""v_mov_b32 v8, 0
v_lshlrev_b32 v10, 2, v0
v_add_u32 v10, {LCS}, v10
v_cmp_gt_u32 vcc, 96, v0
s_and_saveexec_b64 s[28:29], vcc
ds_write_b32 v10, v8
s_mov_b64 exec, s[28:29]""")
    nbar=0
    k("s_waitcnt lgkmcnt(0)")
    k.srd(52,20,WS_SIZE)
    k("s_barrier"); nbar+=1
    k.stamp(1,60)
    for r in reads(0): k.ds(r,'s0')
    for r in reads(1): k.ds(r,'s1')
    AD=[XRD+t for t in range(4)]+[WRD+t for t in range(4)]
    for s in range(32):
        i,t=divmod(s,4); p=s%3
        k.wait_lg(f"s{s}")
        if t==2 and i<7:
            k("s_barrier"); nbar+=1; set_base(i+1,AD)
        nxt=reads(s+2) if s+2<32 else []
        x=f"v[{XF(p)}:{XF(p)+3}]"
        cuts=[0,3,5,7]
        for u in range(3):
            acc=[accQ,accK,accV][u]
            c="0" if s==0 else f"v[{acc}:{acc+15}]"
            w=f"v[{WF(p,u)}:{WF(p,u)+3}]"
            if u<2: k(f"v_mfma_f32_32x32x16_bf16 v[{acc}:{acc+15}], {w}, {x}, {c}")
            else:   k(f"v_mfma_f32_32x32x16_bf16 v[{acc}:{acc+15}], {x}, {w}, {c}")
            for r in nxt[cuts[u]:cuts[u+1]]: k.ds(r,f"s{s+2}")
        if t==0 and not (os.environ.get('NOCS') and s>0):
            for u in range(3):
                c="0" if (s==0 and u==0) else f"v[{CSA}:{CSA+15}]"
                k(f"v_mfma_f32_32x32x16_bf16 v[{CSA}:{CSA+15}], v[{SEL(u)}:{SEL(u)+3}], v[{WF(p,u)}:{WF(p,u)+3}], {c}")
        if s in (6,26) and prof and not os.environ.get('CLK'): k.stamp({6:4,26:7}[s],60)
        if s==10 and os.environ.get('CLK'): k("s_memtime s[68:69]\ns_memrealtime s[70:71]")
        if s==26 and os.environ.get('CLK'): k("s_memtime s[72:73]\ns_memrealtime s[74:75]")
    k(f"""v_lshlrev_b32 v8, 2, v1
v_add_u32 v8, {LCS}, v8
s_mov_b32 exec_hi, 0""")
    for u in range(3): k(f"ds_add_f32 v8, v{CSA+u} offset:{u*128}")
    k("s_mov_b64 exec, -1\ns_waitcnt lgkmcnt(0)")
    k.stamp(2,60)
    k("s_barrier"); nbar+=1
    k.stamp(5,60)
    k(f"""s_lshl_b32 s27, s22, 8
s_add_u32 s27, s27, {LRS}
v_lshlrev_b32 v8, 4, v6
v_add_u32 v11, s27, v8
v_add_u32 v8, {LCS}, v8
v_and_b32 v9, 31, v1
v_lshlrev_b32 v9, 2, v9
v_add_u32 v5, s27, v9
v_add_u32 v9, {LCS}, v9
ds_read_b32 v14, v5
ds_read_b32 v15, v5 offset:128""")
    for q in range(4): k(f"ds_read_b128 v[{64+4*q}:{67+4*q}], v8 offset:{q*32}")
    for q in range(4): k(f"ds_read_b128 v[{80+4*q}:{83+4*q}], v8 offset:{128+q*32}")
    k("ds_read_b32 v13, v9 offset:256")
    for q in range(4): k(f"ds_read_b128 v[{96+4*q}:{99+4*q}], v11 offset:{q*32}")
    k(f"""s_waitcnt lgkmcnt(9)
v_mul_f32 v10, {fhex(QSCALE)}, v15
v_mul_f32 v12, v10, v14
v_mul_f32 v14, v15, v14""")
    k(f"""s_lshl_b32 s27, s23, 2
s_add_u32 s27, s27, s22
s_lshl_b32 s28, s24, 7
s_add_u32 s28, s28, s27
s_lshl_b32 s28, s28, 10
v_lshlrev_b32 v8, 4, v1
s_add_u32 s46, s28, {hex(WS_Q[0])}
s_add_u32 s47, s28, {hex(WS_Q[0]+65536)}
s_add_u32 s48, s28, {hex(WS_K[0])}
s_add_u32 s49, s28, {hex(WS_K[0]+65536)}
s_add_u32 s50, s28, {hex(WS_V[0])}""")
    for r in range(16):
        k(f"v_mul_f32 v{accQ+r}, v10, v{accQ+r}")
        k(f"v_fma_f32 v{accQ+r}, -v12, v{64+r}, v{accQ+r}")
    k("s_waitcnt lgkmcnt(0)")
    for q in range(4): k(f"ds_read_b128 v[{112+4*q}:{115+4*q}], v11 offset:{128+q*32}")
    for j in range(8): k(f"v_cvt_pk_bf16_f32 v{64+j}, v{accQ+2*j}, v{accQ+2*j+1}")
    k("""buffer_store_dwordx4 v[64:67], v8, s[16:19], s46 offen
buffer_store_dwordx4 v[68:71], v8, s[16:19], s47 offen""".replace("s[16:19]","s[52:55]"))
    for r in range(16):
        k(f"v_mul_f32 v{accK+r}, v15, v{accK+r}")
        k(f"v_fma_f32 v{accK+r}, -v14, v{80+r}, v{accK+r}")
    for j in range(8): k(f"v_cvt_pk_bf16_f32 v{72+j}, v{accK+2*j}, v{accK+2*j+1}")
    k("""buffer_store_dwordx4 v[72:75], v8, s[52:55], s48 offen
buffer_store_dwordx4 v[76:79], v8, s[52:55], s49 offen
s_waitcnt lgkmcnt(0)""")
    for r in range(16):
        k(f"v_fma_f32 v{accV+r}, -v{96+r}, v13, v{accV+r}")
        k(f"v_mul_f32 v{accV+r}, v{112+r}, v{accV+r}")
    for j in range(8): k(f"v_cvt_pk_bf16_f32 v{80+j}, v{accV+2*j}, v{accV+2*j+1}")
    k("""v_bfe_u32 v9, v1, 4, 1
v_lshlrev_b32 v9, 16, v9
v_lshl_add_u32 v9, v6, 8, v9
v_and_b32 v10, 15, v1
v_lshl_add_u32 v9, v10, 4, v9
buffer_store_dwordx4 v[80:83], v9, s[52:55], s50 offen
buffer_store_dwordx4 v[84:87], v9, s[52:55], s50 offen offset:512""")
    k.stamp(6,60)
    if prof:
        k("s_waitcnt vmcnt(0)"); k.stamp(3,60); k.stamp_flush(8,60,52,72,22)
    k.dbg_end()
    k("s_endpgm")
    k.label('stats')
    k.vm=[]; k.lg=[]
    base,set_base=mkbase()
    HX=lambda p: 80+4*p
    for r in range(96,100): k(f"v_mov_b32 v{r}, 0")
    def hread(s):
        i,t=divmod(s,4); p=s%3; off=(i%NS)*CH-base[0]
        k.ds(f"ds_read_b128 v[{HX(p)}:{HX(p)+3}], v{XRD+t} offset:{off}",f"h{s}")
    k("s_barrier")
    hread(0); hread(1)
    nb2=1
    for s in range(32):
        i,t=divmod(s,4); p=s%3
        k.wait_lg(f"h{s}")
        if t==2 and i<7:
            k("s_barrier"); nb2+=1; set_base(i+1,[XRD,XRD+1,XRD+2,XRD+3])
        if s+2<32: hread(s+2)
        for j in range(0 if os.environ.get('NOSTAT') else 4):
            r=HX(p)+j
            k(f"""v_lshlrev_b32 v10, 16, v{r}
v_and_b32 v11, 0xffff0000, v{r}
v_add_f32 v96, v96, v10
v_add_f32 v97, v97, v11
v_fmac_f32 v98, v10, v10
v_fmac_f32 v99, v11, v11""")
    k(f"""v_add_f32 v96, v96, v97
v_add_f32 v98, v98, v99
v_mov_b32 v97, v96
v_mov_b32 v99, v98
v_permlane32_swap_b32 v96, v97
v_permlane32_swap_b32 v98, v99
v_add_f32 v96, v96, v97
v_add_f32 v98, v98, v99
v_mul_f32 v96, {fhex(1/512)}, v96
v_mul_f32 v98, {fhex(1/512)}, v98
v_fma_f32 v98, -v96, v96, v98
v_add_f32 v98, {fhex(EPS)}, v98
v_rsq_f32 v98, v98
s_lshl_b32 s27, s25, 8
s_add_u32 s27, s27, {LRS}
v_lshl_add_u32 v2, v5, 2, s27
ds_write_b32 v2, v96
ds_write_b32 v2, v98 offset:128
s_waitcnt lgkmcnt(0)
s_barrier""")
    nb2+=1
    assert nb2==nbar,(nb2,nbar)
    k(f"""s_cmp_lg_u32 s23, 0
s_cbranch_scc1 {k.L('end')}
v_subrev_u32 v9, 256, v0
v_cmp_gt_u32 vcc, 96, v9
s_and_saveexec_b64 s[28:29], vcc
s_cbranch_execz {k.L('end')}
v_lshlrev_b32 v14, 2, v9
v_add_u32 v15, {LCS}, v14
ds_read_b32 v15, v15
v_lshrrev_b32 v14, 5, v9
v_lshlrev_b32 v14, 11, v14
v_and_b32 v3, 31, v9
v_lshl_add_u32 v14, v3, 2, v14
s_lshl_b32 s46, s24, 7
s_add_u32 s46, s46, {hex(WS_CS)}
s_waitcnt lgkmcnt(0)""")
    k.srd(16,20,WS_SIZE)
    k("buffer_store_dword v15, v14, s[16:19], s46 offen\ns_endpgm")
    k.label('loader')
    k.vm=[]; k.lg=[]
    VOX=16; VOW=20
    k("""s_sub_u32 s22, s22, 8
v_lshrrev_b32 v3, 3, v1
v_and_b32 v4, 7, v1
s_lshl_b32 s30, s23, 7
s_lshl_b32 s31, s22, 5
s_add_u32 s30, s30, s31""")
    for a in range(4):
        k(f"""v_add_u32 v5, {8*a}, v3
v_bfe_u32 v6, v5, 1, 3
v_xor_b32 v6, v6, v4
v_add_u32 v5, s30, v5
v_lshlrev_b32 v5, 10, v5
v_lshl_add_u32 v5, v6, 4, v5
v_subrev_u32 v{VOX+a}, {1024*a}, v5""")
    k("""s_lshl_b32 s30, s24, 6
s_mul_i32 s31, s22, 49152
s_add_u32 s30, s30, s31
v_and_b32 v7, 3, v1
v_lshlrev_b32 v7, 4, v7
v_lshrrev_b32 v8, 2, v1""")
    for b in range(3):
        k(f"""v_add_u32 v5, {16*b}, v8
v_mul_u32_u24 v6, 171, v5
v_lshrrev_b32 v6, 9, v6
v_mul_u32_u24 v9, 3, v6
v_sub_u32 v9, v5, v9
v_mul_u32_u24 v6, 3072, v6
v_lshl_add_u32 v6, v9, 10, v6
v_add3_u32 v6, v6, v7, s30
v_subrev_u32 v{VOW+b}, {1024*b}, v6""")
    k("""s_lshl_b32 s25, s22, 12
s_mul_i32 s26, s22, 3072
s_add_u32 s26, s26, 16384
s_waitcnt lgkmcnt(0)""")
    k.srd(8,4,2*MB); k.srd(12,6,512*3072)
    def dma(i):
        sl=i%NS
        k(f"s_add_u32 m0, s25, {sl*CH}\ns_mov_b32 s30, {i*128}")
        for a in range(4): k.vmem(f"buffer_load_dwordx4 v{VOX+a}, s[8:11], s30 offen offset:{1024*a} lds",f"c{i}")
        k(f"s_add_u32 m0, s26, {sl*CH}\ns_mov_b32 s31, {i*196608}")
        for b in range(3): k.vmem(f"buffer_load_dwordx4 v{VOW+b}, s[12:15], s31 offen offset:{1024*b} lds",f"c{i}")
    dma(0)
    dma(1)
    k("""s_lshl_b32 s29, s28, 2
s_add_u32 s29, s29, s22
v_mul_u32_u24 v2, 43, v1
v_lshrrev_b32 v2, 8, v2
v_mul_u32_u24 v3, 6, v2
v_sub_u32 v3, v1, v3
s_mul_i32 s30, s29, 6
v_add_u32 v3, s30, v3
v_mul_u32_u24 v4, 43691, v3
v_lshrrev_b32 v4, 19, v4
v_mul_u32_u24 v5, 12, v4
v_sub_u32 v5, v3, v5
v_lshrrev_b32 v7, 2, v5
v_and_b32 v5, 3, v5
v_mul_u32_u24 v4, 3072, v4
v_lshl_add_u32 v4, v7, 10, v4
v_lshl_add_u32 v4, v5, 7, v4
s_and_b32 s30, s27, 1
s_lshl_b32 s30, s30, 9
v_add_u32 v4, s30, v4
s_mov_b32 s30, 196608
v_mul_lo_u32 v2, v2, s30
v_add_u32 v4, v4, v2
v_and_b32 v5, 3, v1
v_lshrrev_b32 v7, 2, v1
s_lshr_b32 s30, s27, 1
s_lshl_b32 s30, s30, 9
s_lshl_b32 s31, s29, 2
s_add_u32 s30, s30, s31
v_add_u32 v5, s30, v5
v_lshlrev_b32 v5, 10, v5
v_lshl_add_u32 v5, v7, 7, v5
v_mov_b32 v51, v4
v_mov_b32 v52, v5
s_mov_b32 exec_lo, 0xffffc0
s_mov_b32 exec_hi, 0""")
    k.vmem("buffer_load_dword v48, v51, s[12:15], 0 offen",'t')
    k("s_mov_b32 exec_lo, 0xfff0")
    k.vmem("buffer_load_dword v49, v52, s[8:11], 0 offen",'t')
    k("s_mov_b64 exec, -1")
    k(f"""s_getpc_b64 s[44:45]
{k.name}_pc:
s_and_b32 s45, s45, 0xffff
s_mov_b32 s46, (all_code_end-{k.name}_pc)
s_mov_b32 s47, 0x20000
s_lshl_b32 s48, s29, 9
v_lshlrev_b32 v6, 7, v1
s_mov_b32 exec_lo, 0xf
s_mov_b32 exec_hi, 0""")
    k.vmem("buffer_load_dword v50, v6, s[44:47], s48 offen",'t')
    k("s_mov_b64 exec, -1")
    k.srd(16,20,WS_SIZE)
    LEAD=int(os.environ.get('LEAD','3'))
    for i in range(8):
        k.wait_vm(f"c{i}"); k("s_barrier")
        if i==0:
            for c in range(2,LEAD+1): dma(c)
            k("s_mov_b32 exec_lo, 0xff000000\ns_mov_b32 exec_hi, 0xffff")
            k.vmem("buffer_load_dword v53, v51, s[12:15], 0 offen",'t')
            k("s_mov_b32 exec_lo, 0xffff0000\ns_mov_b32 exec_hi, 0")
            k.vmem("buffer_load_dword v54, v52, s[8:11], 0 offen",'t')
            k("s_mov_b64 exec, -1")
        elif i+LEAD<=7: dma(i+LEAD)
        if i==8-LEAD:
            k("""v_and_b32 v5, 31, v1
v_lshrrev_b32 v6, 5, v1
s_lshl_b32 s46, s23, 7
s_lshl_b32 s47, s22, 5
s_add_u32 s46, s46, s47
v_add_u32 v7, s46, v5
v_lshlrev_b32 v7, 10, v7
v_lshl_add_u32 v7, v6, 4, v7
s_lshl_b32 s47, s24, 6""")
            k.vmem("buffer_load_dwordx4 v[24:27], v7, s[8:11], s47 offen",'x0')
            k.vmem("buffer_load_dwordx4 v[28:31], v7, s[8:11], s47 offen offset:32",'x0')
            k("""s_load_dwordx2 s[30:31], s[0:1], 16
s_load_dwordx4 s[32:35], s[0:1], 40
s_load_dwordx2 s[36:37], s[0:1], 56
s_load_dwordx2 s[38:39], s[0:1], 32
s_waitcnt lgkmcnt(0)""")
            k.srd(40,30,512*1024); k.srd(44,32,512*3584); k.srd(48,34,512*3584); k.srd(56,36,1792*1024)
            k("""s_and_b32 s60, s2, 7
s_lshl_b32 s30, s29, 12
v_lshl_add_u32 v2, v1, 7, s30
v_mul_u32_u24 v3, 205, v1
v_lshrrev_b32 v3, 10, v3
v_mul_u32_u24 v4, 5, v3
v_sub_u32 v4, v1, v4
s_lshl_b32 s30, s29, 2
v_add_u32 v3, s30, v3
s_movk_i32 s30, 3584
v_mul_lo_u32 v3, v3, s30
s_mul_i32 s30, s60, 448
s_and_b32 s30, s30, 0xffffff80
v_lshl_add_u32 v3, v4, 7, v3
v_add_u32 v3, s30, v3
s_mul_i32 s30, s60, 229376
s_mul_i32 s31, s29, 1792
s_add_u32 s30, s30, s31
v_lshlrev_b32 v4, 7, v1
s_mov_b32 exec_lo, -1
s_mov_b32 exec_hi, 0""")
            k.vmem("buffer_load_dword v44, v2, s[40:43], 0 offen",'t2')
            if not os.environ.get('FFNT2'):
                k("s_mov_b32 exec_lo, 0xfffff")
                k.vmem("buffer_load_dword v45, v3, s[44:47], 0 offen",'t2')
                k.vmem("buffer_load_dword v46, v3, s[48:51], 0 offen",'t2')
                k("s_mov_b32 exec_lo, 0x3fff")
                k.vmem("buffer_load_dword v47, v4, s[56:59], s30 offen",'t2')
            k("s_mov_b64 exec, -1")
    k("s_barrier")
    k(f"""s_lshl_b32 s30, s23, 2
s_add_u32 s30, s30, s22
s_lshl_b32 s30, s30, 5
s_lshl_b32 s31, s24, 1
s_add_u32 s30, s30, s31
s_lshl_b32 s30, s30, 10
s_add_u32 s30, s30, {hex(WS_X0F)}
v_lshlrev_b32 v8, 4, v1
s_waitcnt vmcnt({1 if os.environ.get('FFNT2') else 4})
buffer_store_dwordx4 v[24:27], v8, s[16:19], s30 offen
buffer_store_dwordx4 v[28:31], v8, s[16:19], s30 offen offset:1024
s_cmp_eq_u32 s22, 1
s_cbranch_scc1 {k.L('sw')}
s_cmp_lg_u32 s22, 0
s_cbranch_scc1 {k.L('end')}
v_mov_b32 v32, 0
v_mov_b32 v33, 0
v_mov_b32 v34, 0
v_mov_b32 v35, 0
s_mul_i32 s27, s2, {ZERO_PER_WG}
s_add_u32 s27, s27, {hex(WS_ST[0])}
s_mov_b32 exec_lo, 0x3fffff
s_mov_b32 exec_hi, 0
buffer_store_dwordx4 v[32:35], v8, s[16:19], s27 offen
s_endpgm""")
    k.label('sw')
    k(f"s_cmp_lg_u32 s2, 0\ns_cbranch_scc1 {k.L('end')}")
    k.srd(40,38,1024)
    k("buffer_load_dwordx4 v[32:35], v8, s[40:43], 0 offen\ns_waitcnt vmcnt(0)")
    for j in range(4):
        k(f"v_lshlrev_b32 v{36+2*j}, 16, v{32+j}\nv_and_b32 v{37+2*j}, 0xffff0000, v{32+j}")
    k("""v_add_f32 v36, v36, v37
v_add_f32 v38, v38, v39
v_add_f32 v40, v40, v41
v_add_f32 v42, v42, v43
v_add_f32 v36, v36, v38
v_add_f32 v40, v40, v42
v_add_f32 v36, v36, v40""")
    wave_red(k,36,'v_add_f32',37)
    k(f"""v_mov_b32 v37, 0
s_mov_b32 s27, {hex(WS_SW)}
s_mov_b64 exec, 1
buffer_store_dword v36, v37, s[16:19], s27 offen""")
    k.label('end')
    k("s_endpgm")
    return k, k.kd(152,96,152), ((256,1,1),(768,1,1),LDS)
```

```python
from common import *
import os

LZ=0; LKEY=4096; LH=4160; LG=4352; LU=LG+32768+32; LD=LU+32768+32; DSTR=1088
LDS_FFN=LD+32*DSTR
def wave_red(k,reg,op,tmp):
    for m in ('quad_perm:[1,0,3,2]','quad_perm:[2,3,0,1]','row_half_mirror','row_mirror'):
        k(f"{op}_dpp v{reg}, v{reg}, v{reg} {m} row_mask:0xf bank_mask:0xf")
    k(f"v_mov_b32 v{tmp}, v{reg}\nv_permlane16_swap_b32 v{reg}, v{tmp}\n{op} v{reg}, v{reg}, v{tmp}")
    k(f"v_mov_b32 v{tmp}, v{reg}\nv_permlane32_swap_b32 v{reg}, v{tmp}\n{op} v{reg}, v{reg}, v{tmp}")

def emit_argmax(k,layer,sw,lkey=None):
    LKEY=lkey if lkey is not None else globals()['LKEY']
    k(f"""s_lshl_b32 s30, s{sw}, 11
v_add_u32 v2, s30, v3
s_mov_b32 s30, {hex(WS_ST[layer])}
s_add_u32 s31, s30, 8192
s_add_u32 s40, s30, 16384
s_add_u32 s46, s20, {hex(WS_SW)}
s_addc_u32 s47, s21, 0
s_load_dword s44, s[46:47], 0""")
    for a,sr_ in enumerate((30,31,40)):
        for q in range(2):
            k(f"buffer_load_dwordx4 v[{16+8*a+4*q}:{19+8*a+4*q}], v2, s[16:19], s{sr_} offen offset:{1024*q}")
    k("s_barrier")
    k(f"""v_lshrrev_b32 v40, 2, v2
v_mov_b32 v41, 0xfffff800
v_mov_b32 v42, {fhex(512.0)}
v_mov_b32 v43, {fhex(EPS*512*512)}
s_waitcnt vmcnt(0) lgkmcnt(0)
v_mov_b32 v44, {fhex(-1/512)}
v_mul_f32 v44, s44, v44""")
    k.stamp(1,50)
    for j in range(8): k(f"v_fma_f32 v{24+j}, v{24+j}, v42, v43")
    for j in range(8): k(f"v_fma_f32 v{32+j}, v{16+j}, v44, v{32+j}")
    for j in range(8): k(f"v_fma_f32 v{24+j}, -v{16+j}, v{16+j}, v{24+j}")
    for j in range(8): k(f"v_rsq_f32 v{24+j}, v{24+j}")
    for j in range(8): k(f"v_add_u32 v{16+j}, {256*(j>>2)+(j&3)}, v40")
    for j in range(8): k(f"v_mul_f32 v{32+j}, v{32+j}, v{24+j}")
    for j in range(8): k(f"v_and_or_b32 v{32+j}, v{32+j}, v41, v{16+j}")
    k("""v_max3_f32 v45, v32, v33, v34
v_max3_f32 v46, v35, v36, v37
v_max3_f32 v45, v45, v38, v39
v_max_f32 v45, v45, v46""")
    wave_red(k,45,'v_max_f32',46)
    k(f"""s_lshl_b32 s41, s{sw}, 2
v_mov_b32 v46, s41
ds_write_b32 v46, v45 offset:{LKEY}
s_waitcnt lgkmcnt(0)
s_barrier
v_mov_b32 v46, 0
ds_read_b128 v[48:51], v46 offset:{LKEY}
s_waitcnt lgkmcnt(0)
v_max3_f32 v48, v48, v49, v50
v_max_f32 v48, v48, v51
v_and_b32 v48, 0x7ff, v48
s_nop 0
v_readfirstlane_b32 s45, v48""")
    k.stamp(4,50)

def emit_ffn(k,layer,xsrc,sf=24,sw=22,publish_h=False):
    k(f"v_lshlrev_b32 v3, 4, v1\ns_cmp_ge_u32 s{sw}, 4\ns_cbranch_scc1 {k.L('ffn_dma')}")
    emit_argmax(k,layer,sw)
    k(f"""s_lshr_b32 s41, s45, 5
s_lshl_b32 s41, s41, 15
s_and_b32 s42, s45, 31
s_lshl_b32 s42, s42, 4
s_add_u32 s41, s41, s42
s_add_u32 s41, s41, {hex(xsrc)}
v_lshlrev_b32 v5, 9, v1
buffer_load_dwordx4 v[8:11], v5, s[16:19], s41 offen
s_lshl_b32 s42, s45, 2
s_add_u32 s42, s42, {hex(WS_ST[layer])}
s_add_u32 s46, s20, s42
s_addc_u32 s47, s21, 0
s_load_dword s40, s[46:47], 0
s_load_dword s41, s[46:47], 8192
s_load_dword s42, s[46:47], 16384
s_barrier""")
    k(f"""v_lshrrev_b32 v4, 4, v1
v_bfe_u32 v5, v1, 2, 2
v_lshl_add_u32 v6, v4, 3, v5
v_lshlrev_b32 v7, 6, v6
v_and_b32 v12, 1, v1
v_lshl_add_u32 v7, v12, 3, v7
s_lshl_b32 s43, s{sw}, 4
v_add_u32 v7, s43, v7
v_bfe_u32 v12, v1, 1, 1
v_mul_u32_u24 v12, {LU-LG}, v12
v_add_u32 v7, v7, v12
v_add_u32 v7, {LG}, v7
v_mul_u32_u24 v6, {DSTR}, v6
v_and_b32 v12, 3, v1
v_lshl_add_u32 v6, v12, 3, v6
s_lshl_b32 s43, s{sw}, 8
v_add_u32 v6, s43, v6
v_add_u32 v6, {LD}, v6""")
    for s in range(16):
        k(f"ds_read_b64_tr_b16 v[{64+4*s}:{65+4*s}], v7 offset:{s*2048}\nds_read_b64_tr_b16 v[{66+4*s}:{67+4*s}], v7 offset:{s*2048+256}")
    for cg in range(0 if publish_h else 8):
        k(f"ds_read_b64_tr_b16 v[{128+4*cg}:{129+4*cg}], v6 offset:{cg*32}\nds_read_b64_tr_b16 v[{130+4*cg}:{131+4*cg}], v6 offset:{cg*32+4*DSTR}")
    k.stamp(5,50)
    k(f"""s_waitcnt lgkmcnt(0)
v_mov_b32 v16, s40
v_mov_b32 v17, s41
v_mul_f32 v16, {fhex(1/512)}, v16
v_mul_f32 v17, {fhex(1/512)}, v17
v_fma_f32 v17, -v16, v16, v17
v_add_f32 v17, {fhex(EPS)}, v17
v_rsq_f32 v17, v17
s_waitcnt vmcnt(0)""")
    k.stamp(6,50)
    if publish_h: k(f"s_branch {k.L('ffn_noxb')}")
    k(f"""s_or_b32 s43, s{sf}, s{sw}
s_cmp_lg_u32 s43, 0
s_cbranch_scc1 {k.L('ffn_noxb')}
v_add_f32 v18, 1.0, v17
v_mul_f32 v19, v16, v17""")
    for j in range(4):
        k(f"""v_lshlrev_b32 v{28+2*j}, 16, v{8+j}
v_and_b32 v{29+2*j}, 0xffff0000, v{8+j}
v_fma_f32 v{28+2*j}, v{28+2*j}, v18, -v19
v_fma_f32 v{29+2*j}, v{29+2*j}, v18, -v19""")
    k(f"""v_lshlrev_b32 v5, 5, v1
s_mov_b32 s43, {hex(WS_XB[layer])}
buffer_store_dwordx4 v[28:31], v5, s[16:19], s43 offen
buffer_store_dwordx4 v[32:35], v5, s[16:19], s43 offen offset:16""")
    k.label('ffn_noxb')
    for j in range(4):
        k(f"""v_lshlrev_b32 v18, 16, v{8+j}
v_and_b32 v19, 0xffff0000, v{8+j}
v_sub_f32 v18, v18, v16
v_sub_f32 v19, v19, v16
v_mul_f32 v18, v18, v17
v_mul_f32 v19, v19, v17
v_cvt_pk_bf16_f32 v{8+j}, v18, v19""")
    k(f"""s_lshl_b32 s43, s{sw}, 10
v_add_u32 v5, s43, v3
ds_write_b128 v5, v[8:11] offset:{LZ}
v_lshl_add_u32 v5, v4, 4, s43
s_waitcnt lgkmcnt(0)""")
    for s in range(16):
        k(f"ds_read_b128 v[{160+4*(s%8)}:{163+4*(s%8)}], v5 offset:{LZ+64*s}")
        if s==7:
            k("s_waitcnt lgkmcnt(0)")
            for t in range(8):
                acc=20+4*(t&1); c="0" if t<2 else f"v[{acc}:{acc+3}]"
                k(f"v_mfma_f32_16x16x32_bf16 v[{acc}:{acc+3}], v[{64+4*t}:{67+4*t}], v[{160+4*t}:{163+4*t}], {c}")
    k("s_waitcnt lgkmcnt(0)")
    for t in range(8,16):
        acc=20+4*(t&1)
        k(f"v_mfma_f32_16x16x32_bf16 v[{acc}:{acc+3}], v[{64+4*t}:{67+4*t}], v[{160+4*(t-8)}:{163+4*(t-8)}], v[{acc}:{acc+3}]")
    k(f"""s_cmp_lg_u32 s{sf}, 0
s_cbranch_scc1 {k.L('ffn_nosel')}
s_cmp_lg_u32 s{sw}, 0
s_cbranch_scc1 {k.L('ffn_nosel')}
v_mov_b32 v29, s42
v_mul_f32 v28, s44, v16
v_sub_f32 v29, v29, v28
v_mul_f32 v29, v29, v17
v_mul_f32 v29, {fhex(-1.4426950408889634)}, v29
v_exp_f32 v29, v29
v_add_f32 v29, 1.0, v29
v_rcp_f32 v37, v29
v_mov_b32 v36, s45
v_mov_b32 v38, v16
v_mov_b32 v39, v17
v_mov_b32 v29, 0
s_mov_b32 s41, {hex(WS_SEL[layer])}
s_mov_b64 s[46:47], exec
s_mov_b64 exec, 1
buffer_store_dwordx4 v[36:39], v29, s[16:19], s41 offen
s_mov_b64 exec, s[46:47]""")
    k.label('ffn_nosel')
    for r in range(4): k(f"v_add_f32 v{20+r}, v{20+r}, v{24+r}")
    for r in range(4): k(f"v_mov_b32 v{24+r}, v{20+r}")
    for r in range(4): k(f"v_permlane32_swap_b32 v{20+r}, v{24+r}")
    for r in range(4): k(f"v_mul_f32 v{28+r}, {fhex(-1.4426950408889634)}, v{20+r}")
    for r in range(4): k(f"v_exp_f32 v{28+r}, v{28+r}")
    for r in range(4): k(f"v_add_f32 v{28+r}, 1.0, v{28+r}")
    for r in range(4): k(f"v_rcp_f32 v{28+r}, v{28+r}")
    for r in range(4): k(f"v_mul_f32 v{20+r}, v{20+r}, v{24+r}")
    for r in range(4): k(f"v_mul_f32 v{20+r}, v{20+r}, v{28+r}")
    if publish_h:
        k(f"""v_and_b32 v5, 15, v1
v_cmp_eq_u32 s[40:41], 1, v5
v_cmp_eq_u32 s[42:43], 2, v5
v_cmp_eq_u32 s[46:47], 3, v5
v_cndmask_b32 v20, v20, v21, s[40:41]
v_cndmask_b32 v20, v20, v22, s[42:43]
v_cndmask_b32 v20, v20, v23, s[46:47]
v_cvt_pk_bf16_f32 v20, v20, v20
v_and_b32 v20, 0xffff, v20
v_or_b32 v20, 0x5a5a0000, v20
v_lshl_add_u32 v5, v4, 2, v5
v_lshlrev_b32 v5, 2, v5
s_lshl_b32 s43, s{sf}, 7
s_lshl_b32 s44, s{sw}, 5
s_add_u32 s43, s43, s44
s_add_u32 s43, s43, {hex(WS_HSEL)}
s_mov_b32 exec_lo, 0x000f000f
s_mov_b32 exec_hi, 0
buffer_store_dword v20, v5, s[16:19], s43 offen sc1
s_mov_b64 exec, -1
s_branch {k.L('ffn_end')}""")
    k(f"""v_cvt_pk_bf16_f32 v20, v20, v21
v_cvt_pk_bf16_f32 v21, v22, v23
s_lshl_b32 s43, s{sw}, 4
v_lshl_add_u32 v5, v4, 3, s43
s_mov_b64 s[46:47], exec
s_mov_b64 exec, 0x10001
ds_write_b64 v5, v[20:21] offset:{LH}
s_mov_b64 exec, s[46:47]
s_waitcnt lgkmcnt(0)
s_barrier
v_lshlrev_b32 v5, 4, v4
ds_read_b128 v[8:11], v5 offset:{LH}
s_waitcnt lgkmcnt(0)""")
    k.stamp(7,50)
    for cg in range(8):
        k(f"v_mfma_f32_16x16x32_bf16 v[{64+4*cg}:{67+4*cg}], v[8:11], v[{128+4*cg}:{131+4*cg}], 0")
    k(f"""v_cmp_eq_u32 s[40:41], 1, v4
v_cmp_eq_u32 s[42:43], 2, v4
v_cmp_eq_u32 s[46:47], 3, v4
s_and_b32 s44, s{sf}, 7
s_lshl_b32 s44, s44, 11
s_lshl_b32 s30, s{sw}, 9
s_add_u32 s44, s44, s30
s_add_u32 s44, s44, {hex(WS_YACC[layer])}
v_lshlrev_b32 v5, 2, v1""")
    for q in range(2):
        b=64+16*q
        k(f"""v_cndmask_b32 v{b}, v{b}, v{b+4}, s[40:41]
v_cndmask_b32 v{b}, v{b}, v{b+8}, s[42:43]
v_cndmask_b32 v{b}, v{b}, v{b+12}, s[46:47]
buffer_atomic_add_f32 v{b}, v5, s[16:19], s44 offen offset:{256*q}""")
    k(f"s_branch {k.L('ffn_end')}")
    k.label('ffn_dma')
    k(f"""s_load_dwordx4 s[4:7], s[0:1], 40
s_load_dwordx2 s[26:27], s[0:1], 56
s_sub_u32 s45, s{sw}, 4
v_lshrrev_b32 v4, 2, v1
s_lshl_b32 s41, s45, 7
v_add_u32 v4, s41, v4
s_movk_i32 s42, 3584
v_mul_lo_u32 v4, v4, s42
v_and_b32 v5, 3, v1
v_lshl_add_u32 v4, v5, 4, v4
s_lshl_b32 s41, s{sf}, 6
v_add_u32 v4, s41, v4
s_lshl_b32 s43, s45, 13
s_waitcnt lgkmcnt(0)""")
    k.srd(8,4,512*3584); k.srd(12,6,512*3584); k.srd(32,26,1792*1024)
    k("s_barrier")
    for a in range(8):
        for srd,lb in ((8,LG),(12,LU)):
            k(f"s_add_u32 m0, s43, {lb+a*1024}\ns_mov_b32 s44, {a*16*3584}\nbuffer_load_dwordx4 v4, s[{srd}:{srd+3}], s44 offen lds")
    k(f"""s_lshl_b32 s41, s{sf}, 5
s_lshl_b32 s42, s45, 3
s_add_u32 s41, s41, s42
s_lshl_b32 s41, s41, 10
s_mul_i32 s43, s42, {DSTR}
s_add_u32 s43, s43, {LD}""")
    for a in range(0 if publish_h else 8):
        k(f"s_mov_b32 m0, s43\ns_add_u32 s43, s43, {DSTR}\nbuffer_load_dwordx4 v3, s[32:35], s41 offen lds\ns_add_u32 s41, s41, 1024")
    k("s_barrier\ns_waitcnt vmcnt(0)\ns_barrier\ns_endpgm")
    k.label('ffn_end')
```

```python
from common import *
from k_ffn import wave_red
import os

def gen_qkv1(prof=False,kidx=0):
    k=KB('qkv1_kernel',prof,kidx)
    NS=5; CH=28672
    LCS=NS*CH
    LFL=LCS+384
    LRS=LCS+512
    LDS=LRS+1024
    ACC=lambda u: 16+16*u
    WF=lambda p,u: 64+12*p+4*u
    XF=lambda p: 112+4*p
    XRD=128; WRD=132; CSA=136; SEL=lambda u: 152+4*u
    FA=164; FV=165; ONE=166
    k("s_cmp_ge_u32 s2, 256")
    k(f"s_cbranch_scc1 {k.L('end')}")
    k.stamp(0,60)
    k.dbg_begin()
    k("""s_load_dwordx4 s[4:7], s[0:1], 0
s_load_dwordx2 s[20:21], s[0:1], 80
v_lshrrev_b32 v2, 6, v0
v_and_b32 v1, 63, v0
v_readfirstlane_b32 s22, v2
s_and_b32 s27, s2, 7
s_lshr_b32 s28, s2, 3""")
    k("""s_lshr_b32 s23, s27, 1
s_lshl_b32 s23, s23, 2
s_and_b32 s29, s28, 3
s_add_u32 s23, s23, s29
s_and_b32 s24, s27, 1
s_lshl_b32 s24, s24, 3
s_lshr_b32 s29, s28, 2
s_add_u32 s24, s24, s29""")
    k(f"s_cmp_ge_u32 s22, 8\ns_cbranch_scc1 {k.L('loader')}")
    k("s_and_b32 s25, s22, 3")
    nspin=[0]
    slow=[]
    def wait_flag(vreg,val,vaddr,off):
        n=nspin[0]; nspin[0]+=1
        k(f"""v_readfirstlane_b32 s30, v{vreg}
s_cmp_lt_u32 s30, {val}
s_cbranch_scc1 {k.L(f'sp{n}')}""")
        k.label(f'go{n}')
        slow.append((n,vreg,val,vaddr,off))
    def emit_slow():
        for n,vreg,val,vaddr,off in slow:
            k.label(f'sp{n}')
            k(f"""ds_read_b32 v{vreg}, v{vaddr} offset:{off}
s_waitcnt lgkmcnt(0)
v_readfirstlane_b32 s30, v{vreg}
s_cmp_lt_u32 s30, {val}
s_cbranch_scc1 {k.L(f'sp{n}')}
s_branch {k.L(f'go{n}')}""")
    def signal(vaddr,off,vone):
        k(f"s_mov_b64 exec, 1\nds_add_u32 v{vaddr}, v{vone} offset:{off}\ns_mov_b64 exec, -1")
    k("""v_and_b32 v5, 31, v1
v_lshrrev_b32 v6, 5, v1
v_bfe_u32 v7, v5, 1, 3
s_lshl_b32 s26, s25, 12
v_lshlrev_b32 v8, 7, v5
v_add_u32 v8, s26, v8
s_cmp_lt_u32 s22, 4
s_cselect_b32 s29, s22, 0""")
    for t in range(4):
        k(f"""s_add_u32 s30, s29, {t}
s_and_b32 s30, s30, 3
s_lshl_b32 s31, s30, 1
v_add_u32 v9, s31, v6
v_xor_b32 v9, v9, v7
v_lshl_add_u32 v{XRD+t}, v9, 4, v8""")
    k(f"v_mov_b32 v{FA}, {LFL}\nv_mov_b32 v{ONE}, 1")
    k(f"s_cmp_ge_u32 s22, 4\ns_cbranch_scc1 {k.L('stats')}")
    k(f"""v_bfe_u32 v7, v1, 2, 2
v_lshl_add_u32 v7, v6, 3, v7
v_mul_u32_u24 v7, 192, v7
v_bfe_u32 v8, v1, 4, 1
v_lshl_add_u32 v7, v8, 5, v7
v_and_b32 v8, 1, v1
v_lshl_add_u32 v7, v8, 4, v7
v_bfe_u32 v8, v1, 1, 1
v_lshl_add_u32 v7, v8, 3, v7
v_add_u32 v7, 16384, v7""")
    for t in range(4):
        k(f"""s_add_u32 s30, s29, {t}
s_and_b32 s30, s30, 3
s_mul_i32 s30, s30, 3072
v_add_u32 v{WRD+t}, s30, v7""")
    k("v_and_b32 v9, 31, v1\nv_mov_b32 v10, 0x3f803f80")
    for u in range(3):
        k(f"v_cmp_eq_u32 s[30:31], {u}, v9\nv_cndmask_b32 v{SEL(u)}, 0, v10, s[30:31]")
        for r in range(1,4): k(f"v_mov_b32 v{SEL(u)+r}, v{SEL(u)}")
    for r in list(range(16,64))+list(range(CSA,CSA+16)): k(f"v_mov_b32 v{r}, 0")
    k(f"""v_mov_b32 v8, 0
v_lshlrev_b32 v10, 2, v0
v_add_u32 v10, {LCS}, v10
v_cmp_gt_u32 vcc, 128, v0
s_and_saveexec_b64 s[28:29], vcc
ds_write_b32 v10, v8
s_mov_b64 exec, s[28:29]
s_waitcnt lgkmcnt(0)""")
    k.srd(52,20,WS_SIZE)
    k("s_barrier")
    def mainloop(name,types):
        base=[0]
        def set_base(i):
            want=(i%NS)//2*2*CH
            if want!=base[0]:
                for t in range(4): k(f"v_add_u32 v{XRD+t}, {hex((want-base[0])&0xffffffff)}, v{XRD+t}\nv_add_u32 v{WRD+t}, {hex((want-base[0])&0xffffffff)}, v{WRD+t}")
                base[0]=want
        def reads(s):
            i,t=divmod(s,4); off=(i%NS)*CH-base[0]
            r=[f"ds_read_b128 v[{XF(t)}:{XF(t)+3}], v{XRD+t} offset:{off}"]
            for u in range(3):
                for e in range(2):
                    r.append(f"ds_read_b64_tr_b16 v[{WF(t,u)+2*e}:{WF(t,u)+2*e+1}], v{WRD+t} offset:{off+4*e*192+u*64}")
            return r
        k.lg=[]
        k(f"ds_read_b32 v{FV}, v{FA}\ns_waitcnt lgkmcnt(0)")
        wait_flag(FV,4,FA,0)
        k.stamp(1,60)
        for r in reads(0): k.ds(r,'s0')
        for r in reads(1): k.ds(r,'s1')
        for s in range(32):
            i,t=divmod(s,4)
            if t==0 and i<7: k.ds(f"ds_read_b32 v{FV}, v{FA} offset:{4*(i+1)}",f"f{i}")
            k.wait_lg(f"s{s}")
            if t==2 and i<7:
                wait_flag(FV,4,FA,4*(i+1)); set_base(i+1)
            if t==1 and 1<=i<=3: signal(FA,32+4*(i-1),ONE); k.lg.append('sig')
            nxt=reads(s+2) if s+2<32 else []
            cuts=[0,3,5,7]
            for u in range(3):
                w=f"v[{WF(t,u)}:{WF(t,u)+3}]"; x=f"v[{XF(t)}:{XF(t)+3}]"; a=f"v[{ACC(u)}:{ACC(u)+15}]"
                if types[u]=='A': k(f"v_mfma_f32_32x32x16_bf16 {a}, {w}, {x}, {a}")
                else:             k(f"v_mfma_f32_32x32x16_bf16 {a}, {x}, {w}, {a}")
                for r in nxt[cuts[u]:cuts[u+1]]: k.ds(r,f"s{s+2}")
            if t==0:
                for u in range(3):
                    k(f"v_mfma_f32_32x32x16_bf16 v[{CSA}:{CSA+15}], v[{SEL(u)}:{SEL(u)+3}], v[{WF(t,u)}:{WF(t,u)+3}], v[{CSA}:{CSA+15}]")
            if s in (6,26) and prof: k.stamp({6:4,26:7}[s],60)
    def epilogue(types,tag):
        k(f"""v_lshlrev_b32 v8, 2, v1
v_add_u32 v8, {LCS}, v8
s_mov_b32 exec_hi, 0""")
        for u in range(3): k(f"ds_add_f32 v8, v{CSA+u} offset:{u*128}")
        k("s_mov_b64 exec, -1\ns_waitcnt lgkmcnt(0)")
        signal(FA,80,ONE)
        k.stamp(2,60)
        if os.environ.get('SPINCNT'): k("s_memtime s[40:41]\ns_waitcnt lgkmcnt(0)\ns_mov_b32 s74, s37\ns_sub_u32 s75, s40, s38")
        k(f"s_lshl_b32 s31, s22, 2\nv_add_u32 v9, s31, v{FA}\nds_read_b32 v{FV}, v{FA} offset:80\nds_read_b32 v10, v9 offset:64\ns_waitcnt lgkmcnt(0)")
        wait_flag(FV,4,FA,80)
        wait_flag(10,1,9,64)
        k.stamp(5,60)
        k(f"""s_lshl_b32 s27, s22, 8
s_add_u32 s27, s27, {LRS}
v_lshlrev_b32 v8, 4, v6
v_add_u32 v11, s27, v8
v_add_u32 v8, {LCS}, v8
v_and_b32 v9, 31, v1
v_lshlrev_b32 v9, 2, v9
v_add_u32 v5, s27, v9
v_add_u32 v9, {LCS}, v9
ds_read_b32 v14, v5
ds_read_b32 v15, v5 offset:128""")
        if 'B' in types:
            for q in range(4): k(f"ds_read_b128 v[{96+4*q}:{99+4*q}], v11 offset:{q*32}")
            for q in range(4): k(f"ds_read_b128 v[{112+4*q}:{115+4*q}], v11 offset:{128+q*32}")
        k(f"""s_lshl_b32 s27, s23, 2
s_add_u32 s27, s27, s22
s_lshl_b32 s27, s27, 10
s_mov_b32 s28, s24
v_lshlrev_b32 v4, 4, v1
v_bfe_u32 v3, v1, 4, 1
v_lshlrev_b32 v3, 16, v3
v_lshl_add_u32 v3, v6, 8, v3
v_and_b32 v10, 15, v1
v_lshl_add_u32 v3, v10, 4, v3
s_waitcnt lgkmcnt(0)""")
        for u in range(3):
            a=ACC(u)
            k(f"s_add_u32 s29, s28, {16*u}\ns_and_b32 s30, s29, 15\ns_lshl_b32 s30, s30, 17\ns_add_u32 s30, s30, s27")
            if types[u]=='A':
                for q in range(4): k(f"ds_read_b128 v[{64+4*q}:{67+4*q}], v8 offset:{u*128+q*32}")
                k(f"""s_cmp_lt_u32 s29, 16
s_cselect_b32 s31, {fhex(QSCALE)}, 1.0
s_mov_b32 s36, {hex(WS_K[0])}
s_cselect_b32 s36, {hex(WS_Q[0])}, s36
s_add_u32 s30, s30, s36
s_add_u32 s36, s30, 65536
v_mul_f32 v10, s31, v15
v_mul_f32 v12, v10, v14
s_waitcnt lgkmcnt(0)""")
                k("v_mov_b32 v128, v10\nv_mov_b32 v129, v10\nv_sub_f32 v130, 0, v12\nv_mov_b32 v131, v130")
                for r in range(0,16,2):
                    k(f"v_pk_mul_f32 v[{a+r}:{a+r+1}], v[{a+r}:{a+r+1}], v[128:129]")
                    k(f"v_pk_fma_f32 v[{a+r}:{a+r+1}], v[{64+r}:{65+r}], v[130:131], v[{a+r}:{a+r+1}]")
                for j in range(8): k(f"v_cvt_pk_bf16_f32 v{80+8*(u&1)+j}, v{a+2*j}, v{a+2*j+1}")
                k(f"buffer_store_dwordx4 v[{80+8*(u&1)}:{83+8*(u&1)}], v4, s[52:55], s30 offen")
                k(f"buffer_store_dwordx4 v[{84+8*(u&1)}:{87+8*(u&1)}], v4, s[52:55], s36 offen")
            else:
                k(f"ds_read_b32 v13, v9 offset:{u*128}\ns_add_u32 s30, s30, {hex(WS_V[0])}\ns_waitcnt lgkmcnt(0)")
                k("v_sub_f32 v130, 0, v13\nv_mov_b32 v131, v130")
                for r in range(0,16,2):
                    k(f"v_pk_fma_f32 v[{a+r}:{a+r+1}], v[{96+r}:{97+r}], v[130:131], v[{a+r}:{a+r+1}]")
                    k(f"v_pk_mul_f32 v[{a+r}:{a+r+1}], v[{a+r}:{a+r+1}], v[{112+r}:{113+r}]")
                for j in range(8): k(f"v_cvt_pk_bf16_f32 v{80+8*(u&1)+j}, v{a+2*j}, v{a+2*j+1}")
                k(f"buffer_store_dwordx4 v[{80+8*(u&1)}:{83+8*(u&1)}], v3, s[52:55], s30 offen")
                k(f"buffer_store_dwordx4 v[{84+8*(u&1)}:{87+8*(u&1)}], v3, s[52:55], s30 offen offset:512")
    mainloop('lAAB','AAB'); epilogue('AAB','b')
    k.label('mdone')
    k.stamp(6,60)
    if prof:
        k("s_waitcnt vmcnt(0)"); k.stamp(3,60); k.stamp_flush(8,60,52,72,22)
    k.dbg_end()
    k("s_endpgm")
    k.label('stats')
    if os.environ.get('NOCONS'): k("s_barrier\ns_endpgm")
    HX=lambda p: 80+4*p
    if os.environ.get('SPRIO'): k(f"s_setprio {os.environ['SPRIO']}")
    for r in range(96,100): k(f"v_mov_b32 v{r}, 0")
    k("s_barrier")
    k(f"ds_read_b32 v{FV}, v{FA}\ns_waitcnt lgkmcnt(0)")
    wait_flag(FV,4,FA,0)
    def acc4(t):
        for j in range(0 if os.environ.get('NOSTAT') else 4):
            r=HX(t)+j
            k(f"""v_lshlrev_b32 v10, 16, v{r}
v_and_b32 v11, 0xffff0000, v{r}
v_add_f32 v96, v96, v10
v_add_f32 v97, v97, v11
v_fmac_f32 v98, v10, v10
v_fmac_f32 v99, v11, v11""")
    sbase=[0]
    def hread(s):
        i,t=divmod(s,4); want=(i%NS)//2*2*CH
        if t==0 and want!=sbase[0]:
            for q in range(4): k(f"v_add_u32 v{XRD+q}, {hex((want-sbase[0])&0xffffffff)}, v{XRD+q}")
            sbase[0]=want
        k.ds(f"ds_read_b128 v[{HX(t)}:{HX(t)+3}], v{XRD+t} offset:{(i%NS)*CH-sbase[0]}",f"h{s}")
    k.lg=[]
    hread(0); hread(1)
    for s in range(32):
        i,t=divmod(s,4)
        if t==0 and i<7: k.ds(f"ds_read_b32 v{FV}, v{FA} offset:{4*(i+1)}",f"f{i}")
        k.wait_lg(f"h{s}")
        if t==2 and i<7: wait_flag(FV,4,FA,4*(i+1))
        if t==1 and 1<=i<=3: signal(FA,32+4*(i-1),ONE); k.lg.append('sig')
        if s+2<32: hread(s+2)
        acc4(t)
    k(f"""v_add_f32 v96, v96, v97
v_add_f32 v98, v98, v99
v_mov_b32 v97, v96
v_mov_b32 v99, v98
v_permlane32_swap_b32 v96, v97
v_permlane32_swap_b32 v98, v99
v_add_f32 v96, v96, v97
v_add_f32 v98, v98, v99
v_mul_f32 v96, {fhex(1/512)}, v96
v_mul_f32 v98, {fhex(1/512)}, v98
v_fma_f32 v98, -v96, v96, v98
v_add_f32 v98, {fhex(EPS)}, v98
v_rsq_f32 v98, v98
s_lshl_b32 s27, s25, 8
s_add_u32 s27, s27, {LRS}
v_lshl_add_u32 v2, v5, 2, s27
ds_write_b32 v2, v96
ds_write_b32 v2, v98 offset:128
s_waitcnt lgkmcnt(0)
s_lshl_b32 s31, s25, 2
v_add_u32 v9, s31, v{FA}""")
    signal(9,64,ONE)
    k(f"s_cmp_lg_u32 s23, 0\ns_cbranch_scc1 {k.L('end')}\nds_read_b32 v{FV}, v{FA} offset:80\ns_waitcnt lgkmcnt(0)")
    wait_flag(FV,4,FA,80)
    k(f"""v_subrev_u32 v9, 256, v0
v_cmp_gt_u32 vcc, 96, v9
s_and_saveexec_b64 s[28:29], vcc
s_cbranch_execz {k.L('end')}
v_lshlrev_b32 v14, 2, v9
v_add_u32 v15, {LCS}, v14
ds_read_b32 v15, v15
v_lshrrev_b32 v14, 5, v9
v_lshlrev_b32 v14, 11, v14
v_and_b32 v3, 31, v9
v_lshl_add_u32 v14, v3, 2, v14
s_lshl_b32 s46, s24, 7
s_add_u32 s46, s46, {hex(WS_CS)}
s_waitcnt lgkmcnt(0)""")
    k.srd(16,20,WS_SIZE)
    k("buffer_store_dword v15, v14, s[16:19], s46 offen\ns_endpgm")
    k.label('loader')
    k.vm=[]; k.lg=[]
    VOX=16; VOW=20
    k("""s_sub_u32 s22, s22, 8
v_lshrrev_b32 v3, 3, v1
v_and_b32 v4, 7, v1
s_lshl_b32 s30, s23, 7
s_lshl_b32 s31, s22, 5
s_add_u32 s30, s30, s31""")
    for a in range(4):
        k(f"""v_add_u32 v5, {8*a}, v3
v_bfe_u32 v6, v5, 1, 3
v_xor_b32 v6, v6, v4
v_add_u32 v5, s30, v5
v_lshlrev_b32 v5, 10, v5
v_lshl_add_u32 v5, v6, 4, v5
v_subrev_u32 v{VOX+a}, {1024*a}, v5""")
    k("""s_lshl_b32 s30, s24, 6
s_mul_i32 s31, s22, 49152
s_add_u32 s30, s30, s31
v_and_b32 v7, 3, v1
v_lshlrev_b32 v7, 4, v7
v_lshrrev_b32 v8, 2, v1""")
    for b in range(3):
        k(f"""v_add_u32 v5, {16*b}, v8
v_mul_u32_u24 v6, 171, v5
v_lshrrev_b32 v6, 9, v6
v_mul_u32_u24 v9, 3, v6
v_sub_u32 v9, v5, v9
v_mul_u32_u24 v6, 3072, v6
v_lshl_add_u32 v6, v9, 10, v6
v_add3_u32 v6, v6, v7, s30
v_subrev_u32 v{VOW+b}, {1024*b}, v6""")
    k("""s_lshl_b32 s25, s22, 12
s_mul_i32 s26, s22, 3072
s_add_u32 s26, s26, 16384
s_waitcnt lgkmcnt(0)""")
    k.srd(8,4,2*MB); k.srd(12,6,512*3072)
    def dma(i):
        sl=i%NS
        k(f"s_add_u32 m0, s25, {sl*CH}\ns_mov_b32 s30, {i*128}")
        for a in range(4): k.vmem(f"buffer_load_dwordx4 v{VOX+a}, s[8:11], s30 offen offset:{1024*a} lds",f"c{i}")
        k(f"s_add_u32 m0, s26, {sl*CH}\ns_mov_b32 s31, {i*196608}")
        for b in range(3): k.vmem(f"buffer_load_dwordx4 v{VOW+b}, s[12:15], s31 offen offset:{1024*b} lds",f"c{i}")
    dma(0)
    dma(1)
    k("""s_lshl_b32 s29, s28, 2
s_add_u32 s29, s29, s22
v_mul_u32_u24 v2, 43, v1
v_lshrrev_b32 v2, 8, v2
v_mul_u32_u24 v3, 6, v2
v_sub_u32 v3, v1, v3
s_mul_i32 s30, s29, 6
v_add_u32 v3, s30, v3
v_mul_u32_u24 v4, 43691, v3
v_lshrrev_b32 v4, 19, v4
v_mul_u32_u24 v5, 12, v4
v_sub_u32 v5, v3, v5
v_lshrrev_b32 v7, 2, v5
v_and_b32 v5, 3, v5
v_mul_u32_u24 v4, 3072, v4
v_lshl_add_u32 v4, v7, 10, v4
v_lshl_add_u32 v4, v5, 7, v4
s_and_b32 s30, s27, 1
s_lshl_b32 s30, s30, 9
v_add_u32 v4, s30, v4
s_mov_b32 s30, 196608
v_mul_lo_u32 v2, v2, s30
v_add_u32 v51, v4, v2
v_and_b32 v5, 3, v1
v_lshrrev_b32 v7, 2, v1
s_lshr_b32 s30, s27, 1
s_lshl_b32 s30, s30, 9
s_lshl_b32 s31, s29, 2
s_add_u32 s30, s30, s31
v_add_u32 v5, s30, v5
v_lshlrev_b32 v5, 10, v5
v_lshl_add_u32 v52, v7, 7, v5""")
    def touch(c0,c1,d0):
        wm=((1<<(6*(c1+1)))-1)&~((1<<(6*c0))-1); xm=((1<<(4*(c1+1)))-1)&~((1<<(4*c0))-1)
        k(f"s_mov_b32 exec_lo, {hex(wm&0xffffffff)}\ns_mov_b32 exec_hi, {hex(wm>>32)}")
        k.vmem(f"buffer_load_dword v{d0}, v51, s[12:15], 0 offen",'t')
        k(f"s_mov_b32 exec_lo, {hex(xm&0xffffffff)}\ns_mov_b32 exec_hi, {hex(xm>>32)}")
        k.vmem(f"buffer_load_dword v{d0+1}, v52, s[8:11], 0 offen",'t')
        k("s_mov_b64 exec, -1")
    touch(1,3,48)
    k(f"""s_getpc_b64 s[44:45]
{k.name}_pc:
s_and_b32 s45, s45, 0xffff
s_mov_b32 s46, (all_code_end-{k.name}_pc)
s_mov_b32 s47, 0x20000
s_lshl_b32 s48, s29, 9
v_lshlrev_b32 v6, 7, v1
s_mov_b32 exec_lo, 0xf
s_mov_b32 exec_hi, 0""")
    k.vmem("buffer_load_dword v50, v6, s[44:47], s48 offen",'t')
    k("s_mov_b64 exec, -1")
    k.srd(16,20,WS_SIZE)
    LFA=60; LFV=61; LONE=62
    k(f"v_mov_b32 v{LFA}, {LFL}\nv_mov_b32 v{LONE}, 1\ns_barrier")
    for i in range(8):
        k.wait_vm(f"c{i}"); signal(LFA,4*i,LONE)
        for nx in ([2,3] if i==0 else [i+3]):
            if nx<=7:
                if nx>=NS:
                    k(f"ds_read_b32 v{LFV}, v{LFA} offset:{32+4*(nx-NS)}\ns_waitcnt lgkmcnt(0)")
                    wait_flag(LFV,8,LFA,32+4*(nx-NS))
                dma(nx)
        if i==0: touch(4,7,54)
        if i==int(os.environ.get('SIDE','4')):
            k("""v_and_b32 v5, 31, v1
v_lshrrev_b32 v6, 5, v1
s_lshl_b32 s46, s23, 7
s_lshl_b32 s47, s22, 5
s_add_u32 s46, s46, s47
v_add_u32 v7, s46, v5
v_lshlrev_b32 v7, 10, v7
v_lshl_add_u32 v7, v6, 4, v7
s_lshl_b32 s47, s24, 6""")
            k.vmem("buffer_load_dwordx4 v[24:27], v7, s[8:11], s47 offen",'x0')
            k.vmem("buffer_load_dwordx4 v[28:31], v7, s[8:11], s47 offen offset:32",'x0')
            k("""s_load_dwordx2 s[30:31], s[0:1], 16
s_load_dwordx4 s[32:35], s[0:1], 40
s_load_dwordx2 s[36:37], s[0:1], 56
s_load_dwordx2 s[38:39], s[0:1], 32
s_waitcnt lgkmcnt(0)""")
            k.srd(40,30,512*1024); k.srd(44,32,512*3584); k.srd(48,34,512*3584); k.srd(56,36,1792*1024)
            k("""s_and_b32 s60, s2, 7
s_lshl_b32 s30, s29, 12
v_lshl_add_u32 v2, v1, 7, s30
v_mul_u32_u24 v3, 205, v1
v_lshrrev_b32 v3, 10, v3
v_mul_u32_u24 v4, 5, v3
v_sub_u32 v4, v1, v4
s_lshl_b32 s30, s29, 2
v_add_u32 v3, s30, v3
s_movk_i32 s30, 3584
v_mul_lo_u32 v3, v3, s30
s_mul_i32 s30, s60, 448
s_and_b32 s30, s30, 0xffffff80
v_lshl_add_u32 v3, v4, 7, v3
v_add_u32 v3, s30, v3
s_mul_i32 s30, s60, 229376
s_mul_i32 s31, s29, 1792
s_add_u32 s30, s30, s31
v_lshlrev_b32 v4, 7, v1
s_mov_b32 exec_lo, -1
s_mov_b32 exec_hi, 0""")
            k.vmem("buffer_load_dword v44, v2, s[40:43], 0 offen",'t2')
            k("s_mov_b32 exec_lo, 0xfffff")
            k.vmem("buffer_load_dword v45, v3, s[44:47], 0 offen",'t2')
            k.vmem("buffer_load_dword v46, v3, s[48:51], 0 offen",'t2')
            k("s_mov_b32 exec_lo, 0x3fff")
            k.vmem("buffer_load_dword v47, v4, s[56:59], s30 offen",'t2')
            k.srd(40,38,1024)
            k("s_mov_b32 exec_lo, 0xff")
            k.vmem("buffer_load_dword v43, v4, s[40:43], 0 offen",'t2')
            k("s_mov_b64 exec, -1")
    k(f"""s_lshl_b32 s30, s23, 2
s_add_u32 s30, s30, s22
s_lshl_b32 s30, s30, 5
s_lshl_b32 s31, s24, 1
s_add_u32 s30, s30, s31
s_lshl_b32 s30, s30, 10
s_add_u32 s30, s30, {hex(WS_X0F)}
v_lshlrev_b32 v8, 4, v1
s_waitcnt vmcnt(5)
buffer_store_dwordx4 v[24:27], v8, s[16:19], s30 offen
buffer_store_dwordx4 v[28:31], v8, s[16:19], s30 offen offset:1024
s_cmp_eq_u32 s22, 1
s_cbranch_scc1 {k.L('sw')}
s_cmp_lg_u32 s22, 0
s_cbranch_scc1 {k.L('end')}
v_mov_b32 v32, 0
v_mov_b32 v33, 0
v_mov_b32 v34, 0
v_mov_b32 v35, 0
s_mul_i32 s27, s2, {ZERO_PER_WG}
s_add_u32 s27, s27, {hex(WS_ST[0])}
s_mov_b32 exec_lo, 0xffffff
s_mov_b32 exec_hi, 0
buffer_store_dwordx4 v[32:35], v8, s[16:19], s27 offen
s_endpgm""")
    k.label('sw')
    k(f"s_cmp_lg_u32 s2, 0\ns_cbranch_scc1 {k.L('end')}")
    k.srd(40,38,1024)
    k("buffer_load_dwordx4 v[32:35], v8, s[40:43], 0 offen\ns_waitcnt vmcnt(0)")
    for j in range(4):
        k(f"v_lshlrev_b32 v{36+2*j}, 16, v{32+j}\nv_and_b32 v{37+2*j}, 0xffff0000, v{32+j}")
    k("""v_add_f32 v36, v36, v37
v_add_f32 v38, v38, v39
v_add_f32 v40, v40, v41
v_add_f32 v42, v42, v43
v_add_f32 v36, v36, v38
v_add_f32 v40, v40, v42
v_add_f32 v36, v36, v40""")
    wave_red(k,36,'v_add_f32',37)
    k(f"""v_mov_b32 v37, 0
s_mov_b32 s27, {hex(WS_SW)}
s_mov_b64 exec, 1
buffer_store_dword v36, v37, s[16:19], s27 offen""")
    k.label('end')
    k("s_endpgm")
    emit_slow()
    return k, k.kd(168,96,168), ((256,1,1),(768,1,1),LDS)
```
